```python
import torch

def _softmax(x, axis=-1):
    return torch.softmax(x, dim=axis)

def _gelu(x):
    return torch.nn.functional.gelu(x, approximate='tanh')

def _silu(x):
    return torch.nn.functional.silu(x)

def _sigmoid(x):
    return torch.sigmoid(x)

def _layernorm(x, axis=-1, eps=1e-05):
    m = x.mean(dim=axis, keepdim=True)
    v = x.var(dim=axis, keepdim=True, unbiased=False)
    return (x - m) / torch.sqrt(v + eps)

def _scatter_add(tgt, idx, src, axis=0):
    return tgt.clone().index_add_(axis, idx, src)

def _segment_sum(src, seg, n):
    out = torch.zeros((n,) + src.shape[1:], dtype=src.dtype)
    return out.index_add_(0, seg, src)

def _pad(x, pw):
    flat = tuple((v for pair in reversed(pw) for v in pair))
    return torch.nn.functional.pad(x, flat)
kernel_name = 'gather_scatter__tensor_product_equiv_equiformer__graph'

def setup_inputs():

    _w = lambda a: (lambda t: t.to(torch.bfloat16) if t.is_floating_point() else t)(torch.as_tensor(a))
    N, deg, C, De = (10000, 16, 128, max(16, 1))
    E = N * deg
    src = (lambda lo, hi, *s: torch.randint(lo, hi, s))(0, N, E).to(torch.int64)
    dst = (lambda lo, hi, *s: torch.randint(lo, hi, s))(0, N, E).to(torch.int64)
    rvec = (lambda *s: torch.randn(*s, dtype=torch.bfloat16) * 0.05)(E, 3).to(float)
    rn = (torch.linalg.norm(rvec, dim=-1, keepdim=True) + 1e-06).to(float)
    rhat = (rvec / rn).to(float)
    eps = torch.zeros((3, 3, 3), dtype=float)
    eps[0, 1, 2] = eps[1, 2, 0] = eps[2, 0, 1] = 1.0
    eps[0, 2, 1] = eps[2, 1, 0] = eps[1, 0, 2] = -1.0
    return {'x': _w((lambda *s: torch.randn(*s, dtype=torch.bfloat16) * 0.2)(N, 4 * C).to(float)), 'rhat': _w(rhat), 'e_attr': _w((lambda *s: torch.randn(*s, dtype=torch.bfloat16) * 0.2)(E, De).to(float)), 'src': _w(src), 'dst': _w(dst), 'w_rad': _w((lambda *s: torch.randn(*s, dtype=torch.bfloat16) * 0.2)(De, 5 * C).to(float)), 'w_si0': _w((lambda *s: torch.randn(*s, dtype=torch.bfloat16) * 0.2)(2 * C, C).to(float)), 'w_si1': _w((lambda *s: torch.randn(*s, dtype=torch.bfloat16) * 0.05)(3 * C, C).to(float)), 'cg_eps': _w(eps)}

def reference(x, rhat, e_attr, src, dst, w_rad, w_si0, w_si1, cg_eps):
    N = x.shape[0]
    C = w_si0.shape[1]
    E = rhat.shape[0]
    x0 = x[:, :C].clone()
    x1 = x[:, C:].reshape(N, 3, C)
    R = (e_attr @ w_rad).reshape(E, 5, C)
    f0 = x0[src]
    f1 = x1[src]
    Y1 = rhat
    p00_0 = f0 * R[:, 0, :]
    p11_0 = torch.einsum('ejc,ej->ec', f1, Y1) * R[:, 1, :]
    p01_1 = torch.einsum('ec,ej->ejc', f0, Y1) * R[:, 2, :][:, None, :]
    p10_1 = f1 * R[:, 3, :][:, None, :]
    p11_1 = torch.einsum('ijk,ekc,ej->eic', cg_eps, f1, Y1) * R[:, 4, :][:, None, :]
    m0 = torch.concatenate([p00_0, p11_0], axis=-1) @ w_si0
    m1 = torch.einsum('ejp,pc->ejc', torch.concatenate([p01_1, p10_1, p11_1], axis=-1), w_si1)
    agg0 = _segment_sum(m0, dst, N)
    agg1 = _segment_sum(m1.reshape(E, 3 * C), dst, N).reshape(N, 3, C)
    gate = _sigmoid(agg0)
    out1 = agg1 * gate[:, None, :]
    return torch.concatenate([agg0, out1.reshape(N, 3 * C)], axis=-1)
```

```python
import re
class Asm:
    def __init__(self): self.lines=[]
    def __call__(self, s, *a):
        for l in (s % a if a else s).split('\n'):
            l=l.strip()
            if l: self.lines.append(l if l.endswith(':') or l.startswith('.') or l.startswith(';') else '    '+l)
    def text(self): return '\n'.join(self.lines)+'\n'
def vr(a,n=1): return 'v%d'%a if n==1 else 'v[%d:%d]'%(a,a+n-1)
def sr(a,n=1): return 's%d'%a if n==1 else 's[%d:%d]'%(a,a+n-1)
def regs_of(op):
    out=set()
    for m in re.finditer(r'\bv\[(\d+):(\d+)\]|\bv(\d+)\b',op):
        if m.group(1): out.update(range(int(m.group(1)),int(m.group(2))+1))
        else: out.add(int(m.group(3)))
    return out
def check_seq(seq, name=''):
    seq=[l.strip() for l in seq if l.strip() and not l.strip().endswith(':') and not l.strip().startswith((';','.'))]
    pos=0; mf={}; vw={}
    for l in seq:
        op=l.split()[0]; ops=l[len(op):].split(',')
        if op.startswith('v_mfma'):
            need=12 if '32x32' in op else 8
            d=regs_of(ops[0]); ab=regs_of(ops[1])|regs_of(ops[2]); c=regs_of(ops[3])
            assert not (d&ab), (name,l)
            for r in ab|c:
                if r in vw and pos-vw[r]-1<2: raise Exception('%s VALU->MFMA %s'%(name,l))
            for r in ab:
                if r in mf and pos-mf[r][0]-1<mf[r][1]: raise Exception('%s MFMA->MFMA AB %s'%(name,l))
            for r in d: mf[r]=(pos,need)
        elif op.startswith(('v_','ds_','buffer_','global_')):
            for r in regs_of(l[len(op):]):
                if r in mf and pos-mf[r][0]-1<mf[r][1]: raise Exception('%s MFMA->use dist %d: %s'%(name,pos-mf[r][0]-1,l))
            if op.startswith('v_') and not op.startswith(('v_cmp','v_readlane','v_readfirst')):
                for r in regs_of(ops[0]): vw[r]=pos
        pos+= (int(l.split()[1])+1) if op=='s_nop' else 1
```

```python
from asmlib import *
TAB=0; WF=0x40000; WR=WF+160*1024; REC=0x80000; WSSZ=REC+160000*48; STAMP=0x900000
def srd(a,d,b,n,stride=0):
    a('s_mov_b32 s%d, s%d',d,b)
    if stride: a('s_and_b32 s%d, s%d, 0xffff\ns_or_b32 s%d, s%d, 0x%x',d+1,b+1,d+1,d+1,stride<<16)
    else: a('s_and_b32 s%d, s%d, 0xffff',d+1,b+1)
    a('s_mov_b32 s%d, %d\ns_mov_b32 s%d, 0x20000',d+2,n,d+3)
def scan(a,v):
    for sh in (1,2,4,8):
        a('s_nop 1\nv_add_u32_dpp v%d, v%d, v%d row_shr:%d row_mask:0xf bank_mask:0xf',v,v,v,sh)
    a('s_nop 1\nv_add_u32_dpp v%d, v%d, v%d row_bcast:15 row_mask:0xa bank_mask:0xf',v,v,v)
    a('s_nop 1\nv_add_u32_dpp v%d, v%d, v%d row_bcast:31 row_mask:0xc bank_mask:0xf',v,v,v)
def genA(a,opt):
    a('''.globl sort_kernel
.p2align 8
.type sort_kernel,@function
sort_kernel:
s_cmp_ge_u32 s2, 250
s_cbranch_scc1 A_end''')
    if opt.get('dbg'): a('s_memrealtime s[70:71]')
    a('''s_load_dwordx16 s[36:51], s[0:1], 0
s_load_dwordx2 s[52:53], s[0:1], 88
s_mul_i32 s3, s2, 640
v_add_u32 v1, s3, v0
v_lshlrev_b32 v2, 2, v1
v_mul_u32_u24 v3, 6, v1
v_lshlrev_b32 v4, 5, v1
v_lshlrev_b32 v5, 2, v0
v_mov_b32 v6, 0
v_lshrrev_b32 v7, 6, v0
ds_write_b32 v5, v6
v_and_b32 v30, 63, v0
v_readfirstlane_b32 s54, v7
s_waitcnt lgkmcnt(0)''')
    srd(a,4,44,640000); a('buffer_load_dword v8, v2, s[4:7], 0 offen')
    srd(a,8,42,640000); a('buffer_load_dword v9, v2, s[8:11], 0 offen')
    srd(a,12,38,960000)
    a('buffer_load_ushort v10, v3, s[12:15], 0 offen\nbuffer_load_ushort v11, v3, s[12:15], 0 offen offset:2\nbuffer_load_ushort v12, v3, s[12:15], 0 offen offset:4')
    srd(a,16,40,5120000)
    a('buffer_load_dwordx4 v[16:19], v4, s[16:19], 0 offen\nbuffer_load_dwordx4 v[20:23], v4, s[16:19], 0 offen offset:16')
    srd(a,20,52,WSSZ if not opt.get('dbg') else STAMP+0x100000)
    npre=0
    if opt.get('apf'):
        srd(a,28,36,10240000)
        a('v_lshlrev_b32 v13, 6, v1\nbuffer_load_dword v40, v13, s[28:31], 0 offen'); npre=1
    a('''s_barrier
s_mov_b32 s55, 214749
s_waitcnt vmcnt(%d)
v_mul_u32_u24 v13, s55, v8
v_lshrrev_b32 v13, 23, v13
v_lshlrev_b32 v14, 2, v13
v_mov_b32 v6, 1
ds_add_rtn_u32 v15, v14, v6
s_movk_i32 s55, 625
v_mad_u32_u24 v13, v13, s55, 15
v_lshrrev_b32 v13, 4, v13
v_sub_u32 v13, v8, v13''',6+npre)
    a('''s_mov_b32 s56, 0
s_cmp_lg_u32 s54, 1
s_cbranch_scc1 A_now
s_cmp_ge_u32 s2, 180
s_cbranch_scc1 A_now
s_mov_b32 s56, 1
s_mov_b32 s27, 0x20000
s_cmp_ge_u32 s2, 160
s_cbranch_scc1 A_rad
s_mul_i32 s57, s2, 205
s_lshr_b32 s57, s57, 12
s_mul_i32 s58, s57, 20
s_sub_u32 s58, s2, s58
s_cmp_lt_u32 s58, 8
s_cselect_b32 s24, s48, s50
s_cselect_b32 s25, s49, s51
s_mov_b32 s26, 0x18000
s_cselect_b32 s26, 0x10000, s26
s_cselect_b32 s59, 0, 8
s_sub_u32 s58, s58, s59
s_and_b32 s25, s25, 0xffff
s_lshl_b32 s58, s58, 13
s_lshl_b32 s57, s57, 5
s_add_u32 s58, s58, s57
v_lshrrev_b32 v31, 4, v30
v_lshlrev_b32 v31, 11, v31
v_and_b32 v32, 15, v30
v_lshl_add_u32 v31, v32, 1, v31
s_movk_i32 s60, 256
s_branch A_wld
A_rad:
s_sub_u32 s57, s2, 160
s_mul_i32 s58, s57, 52
s_lshr_b32 s58, s58, 8
s_mul_i32 s59, s58, 5
s_sub_u32 s57, s57, s59
s_lshl_b32 s57, s57, 8
s_and_b32 s59, s58, 1
s_lshl_b32 s59, s59, 1
s_lshr_b32 s58, s58, 1
s_lshl_b32 s58, s58, 7
s_add_u32 s58, s58, s57
s_add_u32 s58, s58, s59
s_mov_b32 s24, s46
s_and_b32 s25, s47, 0xffff
s_mov_b32 s26, 20480
v_lshrrev_b32 v31, 5, v30
v_mul_u32_u24 v31, 10240, v31
v_and_b32 v32, 31, v30
v_lshl_add_u32 v31, v32, 2, v31
s_movk_i32 s60, 1280
A_wld:''')
    for i in range(8):
        a('buffer_load_ushort v%d, v31, s[24:27], s58 offen\ns_add_u32 s58, s58, s60',48+i)
    a('''A_now:
s_waitcnt lgkmcnt(0)
s_barrier
v_lshlrev_b32 v5, 4, v30
ds_read_b128 v[24:27], v5
s_waitcnt lgkmcnt(0)
v_add_u32 v28, v24, v25
v_add3_u32 v28, v28, v26, v27
v_mov_b32 v29, v28''')
    scan(a,28)
    a('''v_sub_u32 v32, v28, v29
v_add_u32 v33, v32, v24
v_add_u32 v34, v33, v25
v_add_u32 v35, v34, v26
ds_write_b128 v5, v[32:35] offset:4096
ds_read_b32 v14, v14 offset:4096
s_cmp_lg_u32 s54, 0
s_cbranch_scc1 A_notab
v_lshl_or_b32 v24, v24, 16, v32
v_lshl_or_b32 v25, v25, 16, v33
v_lshl_or_b32 v26, v26, 16, v34
v_lshl_or_b32 v27, v27, 16, v35
s_lshl_b32 s57, s2, 10
buffer_store_dwordx4 v[24:27], v5, s[20:23], s57 offen
A_notab:
s_waitcnt vmcnt(0)
v_xor_b32 v28, 0x8000, v11
v_xor_b32 v29, 0x8000, v12
v_xor_b32 v31, 0x8000, v10
v_lshl_or_b32 v44, v10, 16, v28
v_lshl_or_b32 v45, v11, 16, v29
v_lshl_or_b32 v46, v12, 16, v31
v_lshl_or_b32 v47, v13, 16, v9
s_waitcnt lgkmcnt(0)
v_add3_u32 v14, v14, v15, s3
v_mul_u32_u24 v14, 48, v14
s_mov_b32 s57, %d
buffer_store_dwordx4 v[44:47], v14, s[20:23], s57 offen
buffer_store_dwordx4 v[16:19], v14, s[20:23], s57 offen offset:16
buffer_store_dwordx4 v[20:23], v14, s[20:23], s57 offen offset:32
s_cmp_eq_u32 s56, 0
s_cbranch_scc1 A_fin
s_lshl_b32 s57, s2, 10
s_add_u32 s57, s57, %d
v_lshl_or_b32 v36, v49, 16, v48
v_lshl_or_b32 v37, v51, 16, v50
v_lshl_or_b32 v38, v53, 16, v52
v_lshl_or_b32 v39, v55, 16, v54
buffer_store_dwordx4 v[36:39], v5, s[20:23], s57 offen
A_fin:''',REC,WF)
    if opt.get('dbg'):
        a('''s_waitcnt vmcnt(0)
s_memrealtime s[72:73]
s_waitcnt lgkmcnt(0)
v_mov_b32 v0, s70
v_mov_b32 v1, s72
s_mul_i32 s57, s2, 10
s_add_u32 s57, s57, s54
s_lshl_b32 s57, s57, 3
s_add_u32 s57, s57, %d
v_mov_b32 v2, 0
buffer_store_dwordx2 v[0:1], v2, s[20:23], s57 offen''',STAMP)
    a('A_end:\ns_endpgm')
```

```python
from asmlib import *
from kA import *
PROW=2848
L_P=0; L_W=40*PROW; STEPCAP=376; PAD=10
L_DA=L_W+20480; L_YA=L_DA+STEPCAP*32; L_SRC=L_YA+STEPCAP*32; L_CONST=L_SRC+(STEPCAP+8*PAD)*8
L_CNT=L_CONST+512; L_RANK=L_CNT+256; L_NB=L_RANK+256; L_ROW=L_NB+256; L_MAX=L_ROW+256; L_FLAG=L_MAX+16; L_END=L_FLAG+48
assert L_END<=163840 and L_CONST%16==0
J=7
F0=120; X0=152; ACC=184; IDX=206; LOFF=207; COEF=208; D=212; Y0=216; EA=224; W4=228; SEL=232
vDA=235; vYA=236; vSRC=237; vREC=238; vDAm=239; vWad=240; vRecA=241; T0=242; T1=243
vRowP=244; vRow=245; vPend=246; vLaneP=247; vKh16=248; vTid=249; vTab=250; vLane=251; vTmp=252; vFlag=253
sX=8; sWS=12; sOUT=16; sEX=20
sWave=34; sI0=35; sWd=36; sMax=37; sL=38; sU0=39; sC0=40; sCur=41; sEnd=42; sCnt=43; sP2=44; sP20=45
sPhase=46; sIter=47; sInc=48; sInc8=49; sWinc=50; sXoff=51; sXadd=52; sBack=53; sMhi=54; sMlo=56
sTile=58; sN0=59; sNN=60; sREC=61; sT=62; sThr=63; sRet=66; sFl=68
def Rr(p,pi,u):
    return 24*p+(((u+8)&15) if pi==0 else (16+u if u<8 else u))
def park(p,u):
    return W4 if p==4 else 24*(p+1)+(0 if u==0 else 8)
def mfR(p,pi,w): d=24*p+8*pi; return 'v_mfma_f32_32x32x16_bf16 %s, %s, %s, 0'%(vr(d,16),vr(EA,4),vr(w,4))
def wread(p,pi,dst): return 'ds_read_b128 %s, v%d offset:%d'%(vr(dst,4),vWad,(pi*5+p)*1024)
def perms(d=D):
    return ['v_perm_b32 v%d, v%d, v%d, v%d'%(COEF+1+j,d+j,d+(j+2)%3,SEL+j) for j in range(3)]
def fmas(u,pi,first):
    fb=F0+16*(u&1)+8*pi; y=Y0+4*(u&1); t=T0+pi
    def op(k,a,b): return ('v_mul_f32' if first else 'v_fmac_f32')+' v%d, v%d, v%d'%(ACC+2*k+pi,a,b)
    o=[op(0,fb,Rr(0,pi,u)),op(1,fb+1,Rr(1,pi,u)),'v_mul_f32 v%d, v%d, v%d'%(t,fb,Rr(2,pi,u))]
    o+=[op(3+3*j,fb+2+j,Rr(3,pi,u)) for j in range(3)]
    o+=[op(2+3*j,t,y+j) for j in range(3)]
    o+=[op(4+3*j,fb+5+j,Rr(4,pi,u)) for j in range(3)]
    return o
def xloads(dst,idx=IDX,so=None):
    return ['v_add_u32 v%d, v%d, v%d'%(idx,idx,LOFF)]+['buffer_load_dword v%d, v%d, %s, s%d offen offset:%d'%(dst+j,idx,sr(sX,4),sXoff,256*j) for j in range(4)]
def step(u,first):
    o=[]; burst=u in(0,8); pa=1 if u==0 else 0
    f=fmas(u,pa,first)+fmas(u,1-pa,first)
    xr=X0+4*((u+1)&7)
    mF='v_mfma_f32_32x32x16_bf16 %s, %s, %s, 0'%(vr(F0+16*((u+1)&1),16),vr(COEF,4),vr(xr,4))
    tail=[]
    if u==14: tail.append('v_mad_i32_i24 v%d, v%d, s%d, v%d'%(vDA,vDAm,sInc,vDA))
    tail.append('ds_read_b128 %s, v%d offset:%d'%(vr(D,4),vDA,((u+2)&15)*32))
    if u==15: tail.append('v_add_u32 v%d, s%d, v%d'%(vYA,sInc,vYA))
    tail.append('ds_read_b128 %s, v%d offset:%d'%(vr(Y0+4*((u+1)&1),4),vYA,((u+1)&15)*32))
    if u==7: tail.append('s_add_u32 s%d, s%d, s%d'%(sXoff,sXoff,sXadd))
    tail+=xloads(xr)
    if u==6: tail.append('v_add_u32 v%d, s%d, v%d'%(vSRC,sInc8,vSRC))
    tail.append('ds_read_b32 v%d, v%d offset:%d'%(IDX,vSRC,((u+10)&15)*8))
    if u==12: tail.append('v_add_u32 v%d, s%d, v%d'%(vWad,sWinc,vWad))
    if (u&7) in (4,5,6):
        nb=8 if u<8 else 0
        for p in {4:(0,1),5:(2,3),6:(4,)}[u&7]: tail.append(wread(p,1 if nb==8 else 0,park(p,nb)))
    if burst:
        tail.append('s_mov_b64 exec, %s\nbuffer_load_dwordx4 %s, v%d, %s, s%d offen\ns_mov_b64 exec, -1'%(sr(sMhi if u==0 else sMlo,2),vr(EA,4),vRecA,sr(sWS,4),sREC))
        if u==0:
            o+=['s_sub_u32 s%d, s%d, 1'%(sIter,sIter),'s_cmp_eq_u32 s%d, 0'%sIter,'s_cselect_b32 s%d, s%d, 512'%(sInc,sBack),
                's_cselect_b32 s%d, 10240, 0'%sWinc,'s_cselect_b32 s%d, 128, 0'%sXadd,'s_ashr_i32 s%d, s%d, 2'%(sInc8,sInc),
                'v_add_u32 v%d, s%d, v%d'%(vREC,sInc,vREC),'ds_read_b32 v%d, v%d'%(vRecA,vREC)]
        o.append('s_waitcnt vmcnt(28)')
        for p in range(5):
            o.append(mfR(p,1-pa,park(p,u)))
            if p<2: o+=f[:3]; f=f[3:]
            if p==2: o.append('s_waitcnt lgkmcnt(0)'); o+=perms()
            if p==3: o+=f[:3]; f=f[3:]
        o+=f[:3]; f=f[3:]
        if u==0: o.append('v_add_u32 v%d, v%d, v%d'%(vRecA,vKh16,vRecA))
        o.append(mF)
        o+=tail[:4]; tail=tail[4:]
    else:
        o+=f[:4]; o.append('s_waitcnt lgkmcnt(0)'); o+=perms(); o+=f[4:6]; f=f[6:]
        o.append('s_waitcnt vmcnt(29)'); o.append(mF)
    while f or tail:
        if tail: o.append(tail.pop(0))
        if f: o.append(f.pop(0))
    o.append('s_sub_u32 s%d, s%d, 1'%(sCnt,sCnt))
    return '\n'.join(o).split('\n')
def nextseg():
    return ['v_readlane_b32 s%d, v%d, s%d'%(sT,vPend,sP2),'ds_read_b32 v%d, v%d'%(vRow,vRowP),
            's_min_u32 s%d, s%d, s%d'%(sT,sT,sEnd),'s_sub_u32 s%d, s%d, s%d'%(sCnt,sT,sCur),
            's_sub_u32 s%d, s%d, 1'%(sCnt,sCnt),'s_mov_b32 s%d, s%d'%(sCur,sT)]
def flush(u,lab=True):
    o=['v_add_u32 v%d, v%d, v%d'%(vTmp,vRow,vLaneP),'s_cmp_lt_u32 s%d, s%d'%(sCur,sThr),'s_cbranch_scc1 B_FP%d'%u,
       's_call_b64 %s, B_add%d'%(sr(sRet,2),u&1),'B_FP%d:'%u]
    for k in range(11):
        o.append('v_cvt_pk_bf16_f32 v%d, v%d, v%d'%(ACC+2*k,ACC+2*k,ACC+2*k+1))
        if k>1 and k%2==0: o.append('ds_write2st64_b32 v%d, v%d, v%d offset0:%d offset1:%d'%(vTmp,ACC+2*k-4,ACC+2*k-2,k-2,k-1))
    o+=['v_add_u32 v%d, 8, v%d'%(vRowP,vRowP),'s_add_u32 s%d, s%d, 2'%(sP2,sP2),
        'ds_write_b32 v%d, v%d offset:2560'%(vTmp,ACC+20),'ds_write_b32 v%d, v%d'%(vFlag,vLaneP),'s_cmp_eq_u32 s%d, s%d'%(sCur,sEnd)]
    return o
def addold(b):
    f=F0+16*b
    o=['B_add%d:'%b,'s_lshl_b32 s%d, s%d, 7'%(sFl,sPhase),'s_cmp_eq_u32 s%d, s%d'%(sCur,sEnd),'s_cselect_b32 s%d, s%d, -1'%(sFl,sFl),
       'B_spin%d:'%b,'ds_read_b32 v%d, v%d offset:4'%(f+11,vFlag)]
    o+=['ds_read2st64_b32 %s, v%d offset0:%d offset1:%d'%(vr(f+k,2),vTmp,k,k+1) for k in range(0,10,2)]
    o+=['ds_read_b32 v%d, v%d offset:2560'%(f+10,vTmp),'s_waitcnt lgkmcnt(0)','v_readfirstlane_b32 s%d, v%d'%(sT,f+11),
        's_cmp_lt_i32 s%d, s%d'%(sT,sFl),'s_cbranch_scc1 B_spin%d'%b]
    for k in range(11):
        o+=['v_lshlrev_b32 v%d, 16, v%d'%(f+12+(k&1),f+k),'v_and_b32 v%d, 0xffff0000, v%d'%(f+k,f+k),
            'v_add_f32 v%d, v%d, v%d'%(ACC+2*k,ACC+2*k,f+12+(k&1)),'v_add_f32 v%d, v%d, v%d'%(ACC+2*k+1,ACC+2*k+1,f+k)]
    o.append('s_setpc_b64 %s'%sr(sRet,2))
    return o
def restart():
    o=[wread(p,1,24*p+4) for p in range(5)]
    o+=['s_mov_b32 s%d, 1'%sPhase,'s_mov_b32 s%d, s%d'%(sCur,sC0),'s_sub_u32 s%d, s%d, s%d'%(sT,sP2,sP20),'s_lshl_b32 s%d, s%d, 2'%(sT,sT),
        's_mov_b32 s%d, s%d'%(sP2,sP20),'v_subrev_u32 v%d, s%d, v%d'%(vRowP,sT,vRowP),'v_add_u32 v%d, 128, v%d'%(vLaneP,vLaneP),
        's_waitcnt vmcnt(28) lgkmcnt(0)']
    o+=[mfR(p,1,24*p+4) for p in range(5)]
    return o
def stamp(a,opt,i):
    if opt.get('dbg'): a('s_memrealtime s[%d:%d]\ns_waitcnt lgkmcnt(0)',70+2*i,71+2*i)

def genB(a,opt,name):
    a('''.globl %s
.p2align 8
.type %s,@function
%s:
s_cmp_ge_u32 s2, 256
s_cbranch_scc1 B_end''',name,name,name)
    stamp(a,opt,0)
    a('''s_load_dwordx2 s[4:5], s[0:1], 0
s_load_dwordx2 s[6:7], s[0:1], 72
s_load_dwordx2 s[64:65], s[0:1], 88
s_and_b32 s3, s2, 7
s_lshl_b32 s3, s3, 5
s_lshr_b32 s%d, s2, 3
s_add_u32 s%d, s%d, s3''',sTile,sTile,sTile)
    a('''v_mov_b32 v%d, v0
v_and_b32 v%d, 63, v0
v_lshrrev_b32 v1, 6, v0
v_lshrrev_b32 v2, 1, v0
v_readfirstlane_b32 s%d, v1
v_lshlrev_b32 v2, 10, v2
s_lshl_b32 s3, s%d, 2
v_lshlrev_b32 v3, 4, v0
v_mov_b32 v%d, 0
v_cmp_gt_u32 vcc, 500, v0
s_mov_b32 s%d, %d
s_waitcnt lgkmcnt(0)''',vTid,vLane,sWave,sTile,vTab,sREC,REC)
    srd(a,sWS,64,WSSZ if not opt.get('dbg') else STAMP+0x100000)
    a('''s_mov_b64 exec, vcc
buffer_load_dword v%d, v2, %s, s3 offen
s_mov_b64 exec, -1
s_mov_b32 s3, %d
buffer_load_dwordx4 v[100:103], v3, %s, s3 offen
s_add_u32 s3, s3, 8192
buffer_load_dwordx4 v[104:107], v3, %s, s3 offen
s_add_u32 s3, s3, 8192
buffer_load_dwordx4 v[108:111], v3, %s, s3 offen''',vTab,sr(sWS,4),WR,sr(sWS,4),sr(sWS,4),sr(sWS,4))
    srd(a,sX,4,10240000); srd(a,sOUT,6,10240000)
    a('''s_mul_i32 s3, s%d, 625
s_add_u32 s%d, s3, 15
s_lshr_b32 s%d, s%d, 4
s_add_u32 s3, s3, 640
s_lshr_b32 s3, s3, 4
s_sub_u32 s%d, s3, s%d
s_mov_b32 s%d, 0
s_mov_b32 s%d, %d
s_mov_b32 s%d, 0xffff0000
s_mov_b32 s%d, 0xffff0000
s_mov_b32 s%d, 0xffff
s_mov_b32 s%d, 0xffff''',sTile,sN0,sN0,sN0,sNN,sN0,sI0,sWd,2*J,sMhi,sMhi+1,sMlo,sMlo+1)
    a('v_mov_b32 v4, 0\nv_mov_b32 v5, 0\nv_mov_b32 v6, 0\nv_mov_b32 v7, 0\nv_add_u32 v8, 0x10000, v3')
    for i in range(13): a('ds_write_b128 v%d, v[4:7] offset:%d',3 if i<8 else 8,(i&7)*8192)
    a('v_cmp_gt_u32 vcc, %d, v0\ns_mov_b64 exec, vcc\nds_write_b128 v8, v[4:7] offset:%d\ns_mov_b64 exec, -1',(L_W-13*8192)//16,5*8192)
    a('''v_and_b32 v10, 31, v{L}
v_lshlrev_b32 v{LOFF}, 2, v10
v_lshrrev_b32 v11, 5, v{L}
v_lshlrev_b32 v{kh}, 4, v11
v_bfe_u32 v12, v{L}, 2, 1
v_bfe_u32 v13, v{L}, 3, 1
v_and_b32 v14, 3, v{L}
v_lshl_add_u32 v13, v13, 2, v14
v_bfe_u32 v14, v{L}, 4, 1
v_lshlrev_b32 v14, 4, v14
v_cmp_eq_u32 vcc, v11, v12
v_mov_b32 v15, 8
s_nop 0
v_cndmask_b32 v13, v15, v13, vcc'''.format(L=vLane,LOFF=LOFF,kh=vKh16))
    H,M_,Lo=0x0706,0x0302,0x0504
    for j in range(3):
        tab={1:H,2+j:H,5+(j+1)%3:M_,5+(j+2)%3:Lo}
        a('v_mov_b32 v16, 0')
        for ph,val in tab.items():
            a('v_cmp_eq_u32 vcc, %d, v13\nv_mov_b32 v17, 0x%x\ns_nop 0\nv_cndmask_b32 v16, v16, v17, vcc',ph,val^0x0c0c)
        a('v_lshlrev_b32 v16, v14, v16\nv_xor_b32 v%d, 0x0c0c0c0c, v16',SEL+j)
    a('''v_cmp_eq_u32 vcc, 0, v13
v_mov_b32 v17, 0x3f80
v_lshlrev_b32 v17, v14, v17
v_cndmask_b32 v{C}, 0, v17, vcc
v_subrev_u32 v16, 2, v13
v_cmp_le_u32 vcc, 3, v16
v_mov_b32 v17, 1
v_mov_b32 v16, 0x3f803f80
v_cndmask_b32 v{m}, 0, v17, vcc
v_lshlrev_b32 v18, 2, v0
v_add_u32 v18, {LC}, v18
v_cmp_gt_u32 vcc, 128, v0
s_mov_b64 exec, vcc
s_cbranch_execz B_noc
ds_write_b32 v18, v16
B_noc:
s_mov_b64 exec, -1
v_add_u32 v8, {LW}, v3
s_waitcnt vmcnt(0)
ds_write_b128 v8, v[100:103]
ds_write_b128 v8, v[104:107] offset:8192
s_cmp_ge_u32 s{w}, 4
s_cbranch_scc1 B_round
ds_write_b128 v8, v[108:111] offset:16384'''.format(C=COEF,m=vDAm,LC=L_CONST,LW=L_W,w=sWave))
    a('B_round:')
    stamp(a,opt,1)
    a('''v_and_b32 v44, 1, v{t}
v_add_u32 v44, s{i0}, v44
v_lshrrev_b32 v45, 16, v{tab}
s_add_u32 s3, s{i0}, s{wd}
v_min_u32 v46, s3, v45
v_and_b32 v47, 0xffff, v{tab}
v_lshrrev_b32 v48, 1, v{t}
v_mul_u32_u24 v48, 640, v48
v_add3_u32 v47, v47, v48, v44
v_mul_u32_u24 v47, 48, v47'''.format(t=vTid,i0=sI0,tab=vTab,wd=sWd))
    for j in range(J):
        a('v_cmp_lt_u32 %s, v44, v46\nv_add_u32 v44, 2, v44',sr(sEX+2*j,2))
    for j in range(J):
        a('s_mov_b64 exec, %s\ns_cbranch_execz B_ld_done\nbuffer_load_dwordx4 %s, v47, %s, s%d offen offset:%d',sr(sEX+2*j,2),vr(4*j,4),sr(sWS,4),sREC,96*j)
    a('B_ld_done:\ns_mov_b64 exec, -1')
    a('''v_lshlrev_b32 v49, 4, v{t}
v_add_u32 v50, {DA}, v49
v_mov_b32 v52, 0
v_mov_b32 v53, 0
v_mov_b32 v54, 0
v_mov_b32 v55, 0x7fff0000
ds_write_b128 v50, v[52:55]
ds_write_b128 v50, v[52:55] offset:8192
v_cmp_gt_u32 vcc, {n3}, v{t}
v_mov_b32 v56, 0x7fff0000
v_mov_b32 v57, 0x7fff0000
v_lshlrev_b32 v51, 3, v{t}
v_add_u32 v51, {SRC}, v51
s_mov_b64 exec, vcc
ds_write_b128 v50, v[52:55] offset:16384
v_cmp_gt_u32 vcc, {ns}, v{t}
s_mov_b64 exec, vcc
ds_write_b64 v51, v[56:57]
s_mov_b64 exec, -1
v_lshlrev_b32 v58, 2, v{L}
v_add_u32 v58, {CNT}, v58
s_cmp_lg_u32 s{w}, 0
s_cbranch_scc1 B_i1
v_sub_u32 v59, 63, v{L}
ds_write_b32 v58, v59
ds_write_b32 v58, v52 offset:256
v_cmp_eq_u32 vcc, 12, v{L}
v_mov_b32 v59, -1
v_mov_b32 v60, 0x1000
v_cndmask_b32 v59, v59, v60, vcc
v_cmp_gt_u32 vcc, 4, v{L}
s_mov_b64 exec, 0xffff
s_nop 0
v_cndmask_b32 v59, v59, v52, vcc
ds_write_b32 v58, v59 offset:1024
s_mov_b64 exec, -1
B_i1:
s_waitcnt lgkmcnt(0)
s_barrier
v_mov_b32 v59, {MAX}
ds_max_u32 v59, v45
v_mov_b32 v60, 64
s_waitcnt vmcnt(0)'''.format(t=vTid,DA=L_DA,n3=(STEPCAP*64-16384)//16,ns=STEPCAP+8*PAD,SRC=L_SRC,L=vLane,CNT=L_CNT,w=sWave,MAX=L_MAX))
    assert (STEPCAP*64-16384)//16>448 and 448<STEPCAP+8*PAD<=(STEPCAP*64-16384)//16
    stamp(a,opt,2)
    a('s_mov_b32 s3, %d',L_CNT)
    for j in range(J):
        a('s_mov_b64 exec, %s\ns_cbranch_execz B_c_done\nv_lshrrev_b32 v%d, 16, v%d\nv_lshl_add_u32 v%d, v%d, 2, s3\nds_add_rtn_u32 v%d, v%d, v60',
          sr(sEX+2*j,2),36+j,4*j+3,36+j,36+j,28+j,36+j)
    a('''B_c_done:
s_mov_b64 exec, -1
s_waitcnt lgkmcnt(0)
s_barrier
ds_read_b32 v61, v58
ds_read_b32 v62, v59
s_mul_i32 s3, s{w}, 5
v_mov_b32 v63, 0
s_waitcnt lgkmcnt(0)
v_readfirstlane_b32 s{mx}, v62'''.format(w=sWave,mx=sMax))
    for i in range(5):
        a('v_readlane_b32 s%d, v61, s3\ns_add_u32 s3, s3, 1\ns_nop 0\nv_cmp_gt_u32 vcc, s%d, v61\ns_nop 1\nv_addc_co_u32 v63, vcc, 0, v63, vcc',sT,sT)
    a('''ds_add_u32 v58, v63 offset:256
s_waitcnt lgkmcnt(0)
s_barrier
v_cmp_gt_u32 vcc, 40, v{L}
ds_read_b32 v63, v58 offset:256
s_waitcnt lgkmcnt(0)
v_cndmask_b32 v63, v{L}, v63, vcc
v_lshlrev_b32 v63, 2, v63
ds_permute_b32 v64, v63, v61
v_and_b32 v65, 1, v{L}
v_cmp_eq_u32 vcc, 0, v65
s_waitcnt lgkmcnt(0)
v_lshrrev_b32 v66, 6, v64
v_and_b32 v64, 63, v64
v_sub_u32 v64, 63, v64
v_mov_b32_dpp v67, v66 quad_perm:[0,0,2,2] row_mask:0xf bank_mask:0xf
v_cndmask_b32 v68, 0, v66, vcc'''.format(L=vLane))
    scan(a,68)
    a('''v_sub_u32 v69, v68, v67
v_readlane_b32 s3, v68, 63
v_lshl_add_u32 v69, v69, 1, v65
v_lshlrev_b32 v70, 2, v64
v_add_u32 v70, {NB}, v70
ds_write_b32 v70, v69
v_cmp_eq_u32 vcc, 0, v67
v_mul_u32_u24 v64, {PROW}, v64
v_mov_b32 v70, 0x100000
s_add_u32 s3, s3, 7
s_lshr_b32 s3, s3, 3
v_cndmask_b32 v64, v64, v70, vcc
v_cndmask_b32 v{pend}, v68, v70, vcc
ds_write_b32 v58, v64 offset:768
s_max_u32 s{Ls}, s3, 16
s_cmp_le_u32 s{Ls}, {cap}
s_cbranch_scc1 B_fit
s_cmp_gt_u32 s{wd}, 2
s_cselect_b32 s{wd}, 2, 1
s_waitcnt lgkmcnt(0)
s_barrier
s_branch B_round
B_fit:
v_cvt_f32_u32 v71, s{Ls}
v_rcp_f32 v71, v71
s_mov_b32 s{T}, {DA}
v_mul_f32 v72, 0.5, v71'''.format(NB=L_NB,PROW=PROW,pend=vPend,Ls=sL,cap=STEPCAP//8,wd=sWd,T=sT,DA=L_DA))
    for j in range(J):
        a('s_mov_b64 exec, %s\ns_cbranch_execz B_n_done\nds_read_b32 v%d, v%d offset:%d',sr(sEX+2*j,2),36+j,36+j,L_NB-L_CNT)
    a('B_n_done:\ns_mov_b32 s3, %d\ns_waitcnt lgkmcnt(0)',L_SRC)
    for j in range(J):
        m=4*j
        a('''s_mov_b64 exec, {ex}
s_cbranch_execz B_s_done
v_lshrrev_b32 v73, 6, v{pos}
v_lshl_add_u32 v73, v73, 1, v{nb}
v_lshrrev_b32 v74, 1, v73
v_cvt_f32_u32 v74, v74
v_fma_f32 v74, v74, v71, v72
v_cvt_u32_f32 v74, v74
v_mad_u32_u24 v74, v74, {p2}, v73
v_lshl_add_u32 v74, v74, 2, s3
v_and_b32 v75, 0xffff, v{m3}
v_lshlrev_b32 v75, 10, v75
ds_write_b32 v74, v75
v_lshl_add_u32 v73, v73, 4, s{T}
v_add_u32 v{m3}, {ro}, v47
ds_write_b128 v73, {mv}
v_and_b32 v76, 0xffff0000, v{m0}
v_and_b32 v77, 0xffff0000, v{m1}
v_and_b32 v78, 0xffff0000, v{m2}
ds_write_b128 v73, v[76:79] offset:{ya}'''.format(ex=sr(sEX+2*j,2),pos=28+j,nb=36+j,p2=2*PAD,m0=m,m1=m+1,m2=m+2,m3=m+3,T=sT,ro=96*j+16,mv=vr(m,4),ya=L_YA-L_DA))
    a('B_s_done:\ns_mov_b64 exec, -1')
    a('''s_mul_i32 s{c0}, s{w}, s{L}
s_add_u32 s{en}, s{c0}, s{L}
s_mov_b32 s{cur}, s{c0}
s_cmp_eq_u32 s35, 0
s_cselect_b32 s63, s{en}, 0
s_lshl_b32 s3, s{w}, 2
s_add_u32 s3, s3, 163664
v_lshl_add_u32 v253, v{lane}, 20, s3
s_and_b32 s3, s{L}, 15
s_sub_u32 s{u0}, 16, s3
s_add_u32 s3, s{L}, s{u0}
s_lshr_b32 s3, s3, 4
s_sub_u32 s{it}, s3, 1
s_sub_u32 s3, 16, s{L}
s_lshl_b32 s{bk}, s3, 5
s_mov_b32 s{ph}, 0
s_movk_i32 s{inc}, 512
s_movk_i32 s{inc8}, 128
s_mov_b32 s{wi}, 0
s_mov_b32 s{xo}, 0
s_mov_b32 s{xa}, 0
v_cmp_ge_u32 vcc, s{c0}, v{pend}
v_lshrrev_b32 v80, 2, v{kh}
v_mov_b32 v{lp}, v{LOFF}
v_lshlrev_b32 v{wad}, 4, v{lane}
s_bcnt1_i32_b64 s{p2}, vcc
s_mov_b32 s{p20}, s{p2}
v_add_u32 v{wad}, {LW}, v{wad}
s_lshl_b32 s3, s{p2}, 2
s_add_u32 s3, s3, {ROW}
v_add_u32 v{rp}, s3, v80
s_mul_i32 s3, s{w}, {PAD}
s_add_u32 s3, s3, s{c0}
s_lshl_b32 s3, s3, 3
s_add_u32 s3, s3, {SRC}
v_add_u32 v81, s3, v80
s_lshl_b32 s3, s{c0}, 5
s_add_u32 s3, s3, {DA}
v_add_u32 v82, s3, v{kh}
s_lshl_b32 s{T}, s{u0}, 5
s_sub_u32 s3, s3, s{T}
s_add_u32 s3, s3, 12
v_bfe_u32 v83, v{lane}, 3, 2
v_and_b32 v84, 3, v{lane}
v_lshl_add_u32 v83, v83, 2, v84
v_xor_b32 v83, 8, v83
v_bfe_u32 v84, v{lane}, 2, 1
v_lshl_add_u32 v83, v83, 1, v84
v_lshl_add_u32 v83, v83, 4, s3
v_add_u32 v{rec}, 512, v83
v_mov_b32 v85, {LC}
v_cmp_eq_u32 vcc, 1, v{dam}
s_cmp_gt_u32 s{u0}, 15
s_cselect_b32 s3, 512, 0
v_cndmask_b32 v85, v85, v82, vcc
s_sub_u32 s3, s3, s{T}
s_add_u32 s3, s3, {dYA}
v_add_u32 v{ya}, s3, v82
s_cmp_gt_u32 s{u0}, 14
s_cselect_b32 s3, 512, 0
s_sub_u32 s3, s3, s{T}
v_mad_i32_i24 v{da}, v{dam}, s3, v85
s_cmp_gt_u32 s{u0}, 6
s_cselect_b32 s3, 512, 0
s_sub_u32 s3, s3, s{T}
s_ashr_i32 s3, s3, 2
v_add_u32 v{src}, s3, v81'''.format(c0=sC0,w=sWave,L=sL,en=sEnd,cur=sCur,u0=sU0,it=sIter,bk=sBack,ph=sPhase,inc=sInc,inc8=sInc8,wi=sWinc,xo=sXoff,xa=sXadd,
        pend=vPend,kh=vKh16,lp=vLaneP,LOFF=LOFF,wad=vWad,lane=vLane,p2=sP2,p20=sP20,LW=L_W,ROW=L_ROW,rp=vRowP,PAD=PAD,SRC=L_SRC,DA=L_DA,T=sT,
        rec=vREC,LC=L_CONST,dam=vDAm,dYA=L_YA-L_DA,ya=vYA,da=vDA,src=vSRC))
    for r in range(8):
        a('s_sub_u32 s3, %d, s%d\ns_and_b32 s3, s3, 7\ns_lshl_b32 s3, s3, 3\nv_add_u32 v%d, s3, v81\nv_mov_b32 v%d, v%d',r+15+16,sU0,F0+2*r,F0+2*r+1,LOFF)
    a('v_mov_b32 v%d, v%d\ns_waitcnt lgkmcnt(0)\ns_barrier',F0+17,LOFF)
    stamp(a,opt,3)
    e=Asm()
    e('ds_read_b32 v%d, v81',F0+16)
    e('ds_read_b32 v86, v83\nds_read_b32 v%d, v%d',vRecA,vREC)
    for r in range(8): e('ds_read_b32 v%d, v%d offset:8',F0+2*r,F0+2*r)
    e('ds_read_b128 %s, v85\nds_read_b128 %s, v82 offset:%d\ns_waitcnt lgkmcnt(10)',vr(ACC+8,4),vr(Y0,4),L_YA-L_DA)
    for l in xloads(ACC+4,F0+16): e(l)
    e('v_add_u32 v86, v%d, v86\nv_add_u32 v%d, v%d, v%d',vKh16,vRecA,vKh16,vRecA)
    e('buffer_load_dwordx4 %s, v86, %s, s%d offen\nbuffer_load_dwordx4 %s, v%d, %s, s%d offen',vr(EA,4),sr(sWS,4),sREC,vr(ACC,4),vRecA,sr(sWS,4),sREC)
    e('s_waitcnt lgkmcnt(0)')
    for r in range(8):
        for l in xloads(X0+4*r,F0+2*r): e(l)
    e('ds_read_b128 %s, v85 offset:32\nds_read_b32 v%d, v81 offset:72',vr(D,4),IDX)
    for l in perms(ACC+8): e(l)
    for i in range(3): e('v_mov_b32 v%d, v%d',Y0+4+i,Y0+i)
    for l in nextseg(): e(l)
    def cpy(m): return 's_mov_b64 exec, %s\n'%sr(m,2)+''.join('v_mov_b32 v%d, v%d\n'%(EA+i,ACC+i) for i in range(4))+'s_mov_b64 exec, -1'
    mF=['v_mfma_f32_32x32x16_bf16 %s, %s, %s, 0'%(vr(F0+16*b,16),vr(COEF,4),vr(ACC+4,4)) for b in range(2)]
    e('s_cmp_gt_u32 s%d, 8\ns_cbranch_scc1 B_entB',sU0)
    eA=Asm()
    for p in range(5): eA(wread(p,1,24*p+4)); eA(wread(p,0,park(p,0)))
    eA('s_waitcnt vmcnt(32) lgkmcnt(0)')
    for p in range(5): eA(mfR(p,1,24*p+4))
    for p in range(5): eA(mfR(p,0,park(p,0)))
    eA(mF[0]); eA(mF[1]); eA(cpy(sMhi)); eA('s_nop 7\ns_waitcnt vmcnt(0)\ns_cmp_le_u32 s%d, 4\ns_cbranch_scc1 B_go',sU0)
    for p in range(5): eA(wread(p,1,park(p,8)))
    eA('s_branch B_go')
    eB=Asm()
    pk=lambda p: W4 if p==4 else 24*(p+1)+20
    for p in range(5): eB(wread(p,0,24*p+16)); eB(wread(p,1,pk(p)))
    eB('s_waitcnt vmcnt(32) lgkmcnt(0)'); eB(cpy(sMhi)); eB('s_nop 1')
    for p in range(5): eB(mfR(p,0,24*p+16))
    for p in range(5): eB(mfR(p,1,pk(p)))
    eB(mF[0]); eB(mF[1]); eB(cpy(sMlo)); eB('s_nop 7\ns_waitcnt vmcnt(0)\ns_cmp_le_u32 s%d, 12\ns_cbranch_scc1 B_go',sU0)
    for p in range(5): eB(wread(p,0,park(p,0)))
    for x in (eA,eB): check_seq(e.lines+x.lines+step(0,True),'entry')
    a.lines+=e.lines+eA.lines; a('B_entB:'); a.lines+=eB.lines
    a('B_go:\ns_waitcnt lgkmcnt(0)')
    stamp(a,opt,4)
    for u in range(1,16): a('s_cmp_eq_u32 s%d, %d\ns_cbranch_scc1 B_M%d',sU0,u,u)
    a('s_branch B_M0')
    a('.p2align 6')
    for u in range(16):
        a('B_N%d:',u); a('\n'.join(step(u,False))); a('s_cbranch_scc1 B_FL%d',u)
        check_seq(step((u-1)&15,False)+step(u,False)+step((u+1)&15,False),'N%d'%u)
    a('s_branch B_N0')
    for u in range(16):
        a('B_M%d:',u); a('\n'.join(step(u,True))); a('s_cbranch_scc0 B_N%d',(u+1)&15)
        a('B_FL%d:',u); a('\n'.join(flush(u)))
        if u<15: a('s_cbranch_scc1 B_exit'); a('\n'.join(nextseg()))
    a('s_cbranch_scc0 B_seg0\ns_cmp_eq_u32 s%d, 1\ns_cbranch_scc1 B_exit',sPhase)
    if opt.get('dbg'): a('s_memrealtime s[80:81]')
    a('\n'.join(restart()))
    a('B_seg0:'); a('\n'.join(nextseg())); a('s_branch B_M0')
    check_seq(step(15,False)+flush(15)+restart()+nextseg()+step(0,True),'restart')
    for b in range(2): a('\n'.join(addold(b)))
    a('B_exit:')
    stamp(a,opt,6)
    a('''s_add_u32 s{i0}, s{i0}, s{wd}
s_cmp_ge_u32 s{i0}, s{mx}
s_cbranch_scc1 B_gemm
s_waitcnt vmcnt(0) lgkmcnt(0)
s_nop 7
s_barrier
s_branch B_round'''.format(i0=sI0,wd=sWd,mx=sMax))
    gemm(a,opt)
    a('B_end:\ns_endpgm')

def gemm(a,opt):
    G=Asm(); OA=80; RB=124; NR=7
    G('''B_gemm:
s_waitcnt lgkmcnt(0)
s_mul_i32 s3, s{w}, 20480
s_add_u32 s3, s3, {WF}
v_lshlrev_b32 v{t}, 4, v{L}
s_nop 7'''.format(w=sWave,WF=WF,t=vTmp,L=vLane))
    for s in range(20):
        G('buffer_load_dwordx4 %s, v%d, %s, s3 offen offset:%d',vr(4*s,4),vTmp,sr(sWS,4),(s&3)*1024)
        if s&3==3: G('s_add_u32 s3, s3, 4096')
    Pa,Pb0,Pb1,Oa,Ob0,Ob1=ACC,ACC+1,ACC+2,ACC+3,ACC+4,ACC+5
    G('''v_and_b32 v{x}, 15, v{L}
v_lshrrev_b32 v{y}, 4, v{L}
v_mul_u32_u24 v{Pa}, {PROW}, v{x}
v_lshl_add_u32 v{Pa}, v{y}, 4, v{Pa}
s_lshl_b32 s3, s{n0}, 10
s_lshl_b32 s{T}, s{w}, 5
s_add_u32 s3, s3, s{T}
v_lshl_add_u32 v{z}, v{y}, 3, s3
v_lshl_add_u32 v{Oa}, v{x}, 10, v{z}
v_and_b32 v{x}, 7, v{L}
v_add_u32 v{x}, 32, v{x}
v_mul_u32_u24 v{Pb0}, {PROW}, v{x}
v_lshl_add_u32 v{Pb0}, v{y}, 4, v{Pb0}
v_lshl_add_u32 v{Ob0}, v{x}, 10, v{z}
v_cmp_gt_u32 vcc, s{nn}, v{x}
v_mov_b32 v{z}, 0x7fff0000
v_bfe_u32 v{y}, v{L}, 3, 1
v_cndmask_b32 v{Ob0}, v{z}, v{Ob0}, vcc
v_mul_u32_u24 v{x}, 768, v{y}
v_add_u32 v{Pb1}, v{Pb0}, v{x}
v_lshl_add_u32 v{Ob1}, v{y}, 8, v{Ob0}
v_lshl_or_b32 v{Ob0}, v{y}, 30, v{Ob0}
s_barrier'''.format(x=ACC+6,y=ACC+7,z=ACC+8,L=vLane,Pa=Pa,Pb0=Pb0,Pb1=Pb1,Oa=Oa,Ob0=Ob0,Ob1=Ob1,PROW=PROW,n0=sN0,T=sT,w=sWave,nn=sNN))
    stamp(G,opt,7)
    t0=[(0,Pa,0),(1,Pa,16*PROW),(2,Pb0,0)]
    t1=[(3+3*t+j,Pa,16*PROW*t+512+768*j) for t in range(2) for j in range(3)]+[(9,Pb1,512),(10,Pb0,512+1536)]
    ops=[(s,ac,ad,off+64*s) for s in range(8) for ac,ad,off in t0]+[(8+s,ac,ad,off+64*s) for s in range(12) for ac,ad,off in t1]
    rd=lambda i:'ds_read_b128 %s, v%d offset:%d'%(vr(RB+4*(i%NR),4),ops[i][2],ops[i][3])
    for i in range(NR-1): G(rd(i))
    last=-1; sig=[]
    for c in range(12):
        r=OA+c; g=X0+c
        sig+=['v_mul_f32 v%d, 0xbfb8aa3b, v%d'%(g,r),'v_exp_f32 v%d, v%d'%(g,g),'v_add_f32 v%d, 1.0, v%d'%(g,g),'v_rcp_f32 v%d, v%d'%(g,g)]
    sig=[sig[4*c+k] for k in range(4) for c in range(12)]
    st=lambda d,ad,off,so='0':'buffer_store_dwordx2 %s, v%d, %s, %s offen offset:%d'%(vr(d,2),ad,sr(sOUT,4),so,off)
    for t in range(3):
        d=X0+12+2*t
        sig+=['v_cvt_pk_bf16_f32 v%d, v%d, v%d'%(d,OA+4*t,OA+4*t+1),'v_cvt_pk_bf16_f32 v%d, v%d, v%d'%(d+1,OA+4*t+2,OA+4*t+3)]
    G('s_movk_i32 s3, 0x4000')
    for i,(s,ac,ad,off) in enumerate(ops):
        if i+NR-1<len(ops): G(rd(i+NR-1))
        w='lgkmcnt(%d)'%min(NR-1,len(ops)-1-i)
        if s!=last: w='vmcnt(%d) '%(19-s)+w; last=s
        G('s_waitcnt '+w)
        acc=vr(OA+4*ac,4)
        G('v_mfma_f32_16x16x32_bf16 %s, %s, %s, %s',acc,vr(4*s,4),vr(RB+4*(i%NR),4),'0' if s in(0,8) else acc)
        if i>=28 and sig: G(sig.pop(0))
    for t in range(3): G(st(X0+12+2*t,Oa if t<2 else Ob0,0,'s3' if t==1 else '0'))
    stamp(G,opt,8)
    for n,(ac,ad,off) in enumerate(t1):
        gt=X0+4*(n//3); r=OA+4*ac
        for k in range(4): G('v_mul_f32 v%d, v%d, v%d',r+k,r+k,gt+k)
        G('v_cvt_pk_bf16_f32 v%d, v%d, v%d\nv_cvt_pk_bf16_f32 v%d, v%d, v%d',r,r,r+1,r+1,r+2,r+3)
        if n<6: G(st(r,Oa,256*(1+n%3),'s3' if n>=3 else '0'))
        else: G(st(r,Ob1 if n==6 else Ob0,256 if n==6 else 768))
    check_seq(G.lines,'gemm')
    a.lines+=G.lines
    if opt.get('dbg'):
        a('s_waitcnt vmcnt(0)'); stamp(a,opt,9)
        a('s_lshl_b32 s3, s2, 3\ns_add_u32 s3, s3, s%d\ns_lshl_b32 s3, s3, 6\ns_add_u32 s3, s3, %d\nv_mov_b32 v20, 0',sWave,STAMP+0x10000)
        for i in range(10): a('v_mov_b32 v%d, s%d',i,70+2*i)
        a('v_mov_b32 v10, s%d\ns_getreg_b32 s4, hwreg(HW_REG_XCC_ID)\nv_mov_b32 v11, s4',sL)
        for i in range(3): a('buffer_store_dwordx4 %s, v20, %s, s3 offen offset:%d',vr(4*i,4),sr(sWS,4),16*i)
```

```python
import sys
from asmlib import *
from kA import *
from kB import *
NAME='gather_scatter__tensor_product_equiv_equiformer__graph'
def desc(n,v,s=102):
    return '''.p2align 6
.amdhsa_kernel %s
  .amdhsa_next_free_vgpr %d
  .amdhsa_next_free_sgpr %d
  .amdhsa_accum_offset %d
  .amdhsa_group_segment_fixed_size 0
  .amdhsa_kernarg_size 96
  .amdhsa_user_sgpr_count 2
  .amdhsa_user_sgpr_kernarg_segment_ptr 1
  .amdhsa_system_sgpr_workgroup_id_x 1
.end_amdhsa_kernel
'''%(n,v,s,v)
def build(opt):
    hdr=''.join(l for l in open('cdna_kernels/%s.s.ref'%NAME) if l.startswith(';') and '@launch' not in l and 'Override' not in l and 'grid=ceil' not in l)
    a=Asm()
    a('.amdgcn_target "amdgcn-amd-amdhsa--gfx950"\n.text')
    genA(a,opt); genB(a,opt,NAME+'_kernel')
    return (hdr+'; @launch kernel=sort_kernel grid=(250,1,1) block=(640,1,1) lds=5120\n'
      +'; @launch kernel=%s_kernel grid=(256,1,1) block=(512,1,1) lds=%d\n'%(NAME,L_END)
      +a.text()+'.section .rodata,"a"\n'+desc('sort_kernel',56)+desc(NAME+'_kernel',256))
if __name__=='__main__':
    out=sys.argv[1]; opt={}
    for x in sys.argv[2:]:
        k,_,v=x.partition('='); opt[k]=int(v) if v else 1
    t=build(opt)
    if opt.get('strip'):
        L=t.split('\n'); i=L.index('B_N0:'); j=L.index('B_exit:')
        pat={1:('buffer_load_dword ',),2:('ds_read_b128 v[21','ds_read_b128 v[22'),3:('v_mfma',),4:('v_fmac','v_mul_f32'),5:('ds_pk',),6:('buffer_load_dwordx4',)}[opt['strip']]
        t='\n'.join(L[:i]+[l for l in L[i:j] if not l.strip().startswith(pat)]+L[j:])
    open(out,'w').write(t)
```

```python
from asmlib import *
from kA import *
PROW=2848
L_P=0; L_W=40*PROW; STEPCAP=376; PAD=10
L_DA=L_W+20480; L_YA=L_DA+STEPCAP*32; L_SRC=L_YA+STEPCAP*32; L_CONST=L_SRC+(STEPCAP+8*PAD)*8
L_CNT=L_CONST+512; L_RANK=L_CNT+256; L_NB=L_RANK+256; L_ROW=L_NB+256; L_MAX=L_ROW+256; L_FLAG=L_MAX+16; L_END=L_FLAG+48
assert L_END<=163840 and L_CONST%16==0
J=7
F0=120; X0=152; ACC=184; IDX=206; LOFF=207; COEF=208; D=212; Y0=216; EA=224; W4=228; SEL=232
vDA=235; vYA=236; vSRC=237; vREC=238; vDAm=239; vWad=240; vRecA=241; T0=242; T1=243
vRowP=244; vRow=245; vPend=246; vLaneP=247; vKh16=248; vTid=249; vTab=250; vLane=251; vTmp=252; vFlag=253
sX=8; sWS=12; sOUT=16; sEX=20
sWave=34; sI0=35; sWd=36; sMax=37; sL=38; sU0=39; sC0=40; sCur=41; sEnd=42; sCnt=43; sP2=44; sP20=45
sPhase=46; sIter=47; sInc=48; sInc8=49; sWinc=50; sXoff=51; sXadd=52; sBack=53; sMhi=54; sMlo=56
sTile=58; sN0=59; sNN=60; sREC=61; sT=62; sThr=63; sRet=66; sFl=68
def Rr(p,pi,u):
    return 24*p+(((u+8)&15) if pi==0 else (16+u if u<8 else u))
def park(p,u):
    return W4 if p==4 else 24*(p+1)+(0 if u==0 else 8)
def mfR(p,pi,w): d=24*p+8*pi; return 'v_mfma_f32_32x32x16_bf16 %s, %s, %s, 0'%(vr(d,16),vr(EA,4),vr(w,4))
def wread(p,pi,dst): return 'ds_read_b128 %s, v%d offset:%d'%(vr(dst,4),vWad,(pi*5+p)*1024)
def perms(d=D):
    return ['v_perm_b32 v%d, v%d, v%d, v%d'%(COEF+1+j,d+j,d+(j+2)%3,SEL+j) for j in range(3)]
def fmas(u,pi,first):
    fb=F0+16*(u&1)+8*pi; y=Y0+4*(u&1); t=T0+pi
    def op(k,a,b): return ('v_mul_f32' if first else 'v_fmac_f32')+' v%d, v%d, v%d'%(ACC+2*k+pi,a,b)
    o=[op(0,fb,Rr(0,pi,u)),op(1,fb+1,Rr(1,pi,u)),'v_mul_f32 v%d, v%d, v%d'%(t,fb,Rr(2,pi,u))]
    o+=[op(3+3*j,fb+2+j,Rr(3,pi,u)) for j in range(3)]
    o+=[op(2+3*j,t,y+j) for j in range(3)]
    o+=[op(4+3*j,fb+5+j,Rr(4,pi,u)) for j in range(3)]
    return o
def xloads(dst,idx=IDX,so=None):
    return ['v_add_u32 v%d, v%d, v%d'%(idx,idx,LOFF)]+['buffer_load_dword v%d, v%d, %s, s%d offen offset:%d'%(dst+j,idx,sr(sX,4),sXoff,256*j) for j in range(4)]
def step(u,first):
    o=[]; burst=u in(0,8); pa=1 if u==0 else 0
    f=fmas(u,pa,first)+fmas(u,1-pa,first)
    xr=X0+4*((u+1)&7)
    mF='v_mfma_f32_32x32x16_bf16 %s, %s, %s, 0'%(vr(F0+16*((u+1)&1),16),vr(COEF,4),vr(xr,4))
    tail=[]
    if u==14: tail.append('v_mad_i32_i24 v%d, v%d, s%d, v%d'%(vDA,vDAm,sInc,vDA))
    tail.append('ds_read_b128 %s, v%d offset:%d'%(vr(D,4),vDA,((u+2)&15)*32))
    if u==15: tail.append('v_add_u32 v%d, s%d, v%d'%(vYA,sInc,vYA))
    tail.append('ds_read_b128 %s, v%d offset:%d'%(vr(Y0+4*((u+1)&1),4),vYA,((u+1)&15)*32))
    if u==7: tail.append('s_add_u32 s%d, s%d, s%d'%(sXoff,sXoff,sXadd))
    tail+=xloads(xr)
    if u==6: tail.append('v_add_u32 v%d, s%d, v%d'%(vSRC,sInc8,vSRC))
    tail.append('ds_read_b32 v%d, v%d offset:%d'%(IDX,vSRC,((u+10)&15)*8))
    if u==12: tail.append('v_add_u32 v%d, s%d, v%d'%(vWad,sWinc,vWad))
    if (u&7) in (4,5,6):
        nb=8 if u<8 else 0
        for p in {4:(0,1),5:(2,3),6:(4,)}[u&7]: tail.append(wread(p,1 if nb==8 else 0,park(p,nb)))
    if burst:
        tail.append('s_mov_b64 exec, %s\nbuffer_load_dwordx4 %s, v%d, %s, s%d offen\ns_mov_b64 exec, -1'%(sr(sMhi if u==0 else sMlo,2),vr(EA,4),vRecA,sr(sWS,4),sREC))
        if u==0:
            o+=['s_sub_u32 s%d, s%d, 1'%(sIter,sIter),'s_cmp_eq_u32 s%d, 0'%sIter,'s_cselect_b32 s%d, s%d, 512'%(sInc,sBack),
                's_cselect_b32 s%d, 10240, 0'%sWinc,'s_cselect_b32 s%d, 128, 0'%sXadd,'s_ashr_i32 s%d, s%d, 2'%(sInc8,sInc),
                'v_add_u32 v%d, s%d, v%d'%(vREC,sInc,vREC),'ds_read_b32 v%d, v%d'%(vRecA,vREC)]
        o.append('s_waitcnt vmcnt(28)')
        for p in range(5):
            o.append(mfR(p,1-pa,park(p,u)))
            if p<2: o+=f[:3]; f=f[3:]
            if p==2: o.append('s_waitcnt lgkmcnt(0)'); o+=perms()
            if p==3: o+=f[:3]; f=f[3:]
        o+=f[:3]; f=f[3:]
        if u==0: o.append('v_add_u32 v%d, v%d, v%d'%(vRecA,vKh16,vRecA))
        o.append(mF)
        o+=tail[:4]; tail=tail[4:]
    else:
        o+=f[:4]; o.append('s_waitcnt lgkmcnt(0)'); o+=perms(); o+=f[4:6]; f=f[6:]
        o.append('s_waitcnt vmcnt(29)'); o.append(mF)
    while f or tail:
        if tail: o.append(tail.pop(0))
        if f: o.append(f.pop(0))
    o.append('s_sub_u32 s%d, s%d, 1'%(sCnt,sCnt))
    return '\n'.join(o).split('\n')
def nextseg():
    return ['v_readlane_b32 s%d, v%d, s%d'%(sT,vPend,sP2),'ds_read_b32 v%d, v%d'%(vRow,vRowP),
            's_min_u32 s%d, s%d, s%d'%(sT,sT,sEnd),'s_sub_u32 s%d, s%d, s%d'%(sCnt,sT,sCur),
            's_sub_u32 s%d, s%d, 1'%(sCnt,sCnt),'s_mov_b32 s%d, s%d'%(sCur,sT)]
def flush(u,lab=True):
    o=['v_add_u32 v%d, v%d, v%d'%(vTmp,vRow,vLaneP),'s_cmp_lt_u32 s%d, s%d'%(sCur,sThr),'s_cbranch_scc1 B_FP%d'%u,
       's_call_b64 %s, B_add%d'%(sr(sRet,2),u&1),'B_FP%d:'%u]
    for k in range(11):
        o.append('v_cvt_pk_bf16_f32 v%d, v%d, v%d'%(ACC+2*k,ACC+2*k,ACC+2*k+1))
        if k>1 and k%2==0: o.append('ds_write2st64_b32 v%d, v%d, v%d offset0:%d offset1:%d'%(vTmp,ACC+2*k-4,ACC+2*k-2,k-2,k-1))
    o+=['v_add_u32 v%d, 8, v%d'%(vRowP,vRowP),'s_add_u32 s%d, s%d, 2'%(sP2,sP2),
        'ds_write_b32 v%d, v%d offset:2560'%(vTmp,ACC+20),'ds_write_b32 v%d, v%d'%(vFlag,vLaneP),'s_cmp_eq_u32 s%d, s%d'%(sCur,sEnd)]
    return o
def addold(b):
    f=F0+16*b
    o=['B_add%d:'%b,'s_lshl_b32 s%d, s%d, 7'%(sFl,sPhase),'s_cmp_eq_u32 s%d, s%d'%(sCur,sEnd),'s_cselect_b32 s%d, s%d, -1'%(sFl,sFl),
       'B_spin%d:'%b,'ds_read_b32 v%d, v%d offset:4'%(f+11,vFlag)]
    o+=['ds_read2st64_b32 %s, v%d offset0:%d offset1:%d'%(vr(f+k,2),vTmp,k,k+1) for k in range(0,10,2)]
    o+=['ds_read_b32 v%d, v%d offset:2560'%(f+10,vTmp),'s_waitcnt lgkmcnt(0)','v_readfirstlane_b32 s%d, v%d'%(sT,f+11),
        's_cmp_lt_i32 s%d, s%d'%(sT,sFl),'s_cbranch_scc1 B_spin%d'%b]
    for k in range(11):
        o+=['v_lshlrev_b32 v%d, 16, v%d'%(f+12+(k&1),f+k),'v_and_b32 v%d, 0xffff0000, v%d'%(f+k,f+k),
            'v_add_f32 v%d, v%d, v%d'%(ACC+2*k,ACC+2*k,f+12+(k&1)),'v_add_f32 v%d, v%d, v%d'%(ACC+2*k+1,ACC+2*k+1,f+k)]
    o.append('s_setpc_b64 %s'%sr(sRet,2))
    return o
def restart():
    o=[wread(p,1,24*p+4) for p in range(5)]
    o+=['s_mov_b32 s%d, 1'%sPhase,'s_mov_b32 s%d, s%d'%(sCur,sC0),'s_sub_u32 s%d, s%d, s%d'%(sT,sP2,sP20),'s_lshl_b32 s%d, s%d, 2'%(sT,sT),
        's_mov_b32 s%d, s%d'%(sP2,sP20),'v_subrev_u32 v%d, s%d, v%d'%(vRowP,sT,vRowP),'v_add_u32 v%d, 128, v%d'%(vLaneP,vLaneP),
        's_waitcnt vmcnt(28) lgkmcnt(0)']
    o+=[mfR(p,1,24*p+4) for p in range(5)]
    return o
def stamp(a,opt,i):
    if opt.get('dbg'):
        if i in (4,6): a('s_memtime s[%d:%d]',88+i,89+i)
        a('s_memrealtime s[%d:%d]\ns_waitcnt lgkmcnt(0)',70+2*i,71+2*i)

def genB(a,opt,name):
    a('''.globl %s
.p2align 8
.type %s,@function
%s:
s_cmp_ge_u32 s2, 256
s_cbranch_scc1 B_end''',name,name,name)
    stamp(a,opt,0)
    a('''s_load_dwordx2 s[4:5], s[0:1], 0
s_load_dwordx2 s[6:7], s[0:1], 72
s_load_dwordx2 s[64:65], s[0:1], 88
s_and_b32 s3, s2, 7
s_lshl_b32 s3, s3, 5
s_lshr_b32 s%d, s2, 3
s_add_u32 s%d, s%d, s3''',sTile,sTile,sTile)
    a('''v_mov_b32 v%d, v0
v_and_b32 v%d, 63, v0
v_lshrrev_b32 v1, 6, v0
v_lshrrev_b32 v2, 1, v0
v_readfirstlane_b32 s%d, v1
v_lshlrev_b32 v2, 10, v2
s_lshl_b32 s3, s%d, 2
v_lshlrev_b32 v3, 4, v0
v_mov_b32 v%d, 0
v_cmp_gt_u32 vcc, 500, v0
s_mov_b32 s%d, %d
s_waitcnt lgkmcnt(0)''',vTid,vLane,sWave,sTile,vTab,sREC,REC)
    srd(a,sWS,64,WSSZ if not opt.get('dbg') else STAMP+0x100000)
    a('''s_mov_b64 exec, vcc
buffer_load_dword v%d, v2, %s, s3 offen
s_mov_b64 exec, -1
s_mov_b32 s3, %d
buffer_load_dwordx4 v[100:103], v3, %s, s3 offen
s_add_u32 s3, s3, 8192
buffer_load_dwordx4 v[104:107], v3, %s, s3 offen
s_add_u32 s3, s3, 8192
buffer_load_dwordx4 v[108:111], v3, %s, s3 offen''',vTab,sr(sWS,4),WR,sr(sWS,4),sr(sWS,4),sr(sWS,4))
    srd(a,sX,4,10240000); srd(a,sOUT,6,10240000)
    a('''s_mul_i32 s3, s%d, 625
s_add_u32 s%d, s3, 15
s_lshr_b32 s%d, s%d, 4
s_add_u32 s3, s3, 640
s_lshr_b32 s3, s3, 4
s_sub_u32 s%d, s3, s%d
s_mov_b32 s%d, 0
s_mov_b32 s%d, %d
s_mov_b32 s%d, 0xffff0000
s_mov_b32 s%d, 0xffff0000
s_mov_b32 s%d, 0xffff
s_mov_b32 s%d, 0xffff''',sTile,sN0,sN0,sN0,sNN,sN0,sI0,sWd,2*J,sMhi,sMhi+1,sMlo,sMlo+1)
    a('v_mov_b32 v4, 0\nv_mov_b32 v5, 0\nv_mov_b32 v6, 0\nv_mov_b32 v7, 0\nv_add_u32 v8, 0x10000, v3')
    for i in range(13): a('ds_write_b128 v%d, v[4:7] offset:%d',3 if i<8 else 8,(i&7)*8192)
    a('v_cmp_gt_u32 vcc, %d, v0\ns_mov_b64 exec, vcc\nds_write_b128 v8, v[4:7] offset:%d\ns_mov_b64 exec, -1',(L_W-13*8192)//16,5*8192)
    a('''v_and_b32 v10, 31, v{L}
v_lshlrev_b32 v{LOFF}, 2, v10
v_lshrrev_b32 v11, 5, v{L}
v_lshlrev_b32 v{kh}, 4, v11
v_bfe_u32 v12, v{L}, 2, 1
v_bfe_u32 v13, v{L}, 3, 1
v_and_b32 v14, 3, v{L}
v_lshl_add_u32 v13, v13, 2, v14
v_bfe_u32 v14, v{L}, 4, 1
v_lshlrev_b32 v14, 4, v14
v_cmp_eq_u32 vcc, v11, v12
v_mov_b32 v15, 8
s_nop 0
v_cndmask_b32 v13, v15, v13, vcc'''.format(L=vLane,LOFF=LOFF,kh=vKh16))
    H,M_,Lo=0x0706,0x0302,0x0504
    for j in range(3):
        tab={1:H,2+j:H,5+(j+1)%3:M_,5+(j+2)%3:Lo}
        a('v_mov_b32 v16, 0')
        for ph,val in tab.items():
            a('v_cmp_eq_u32 vcc, %d, v13\nv_mov_b32 v17, 0x%x\ns_nop 0\nv_cndmask_b32 v16, v16, v17, vcc',ph,val^0x0c0c)
        a('v_lshlrev_b32 v16, v14, v16\nv_xor_b32 v%d, 0x0c0c0c0c, v16',SEL+j)
    a('''v_cmp_eq_u32 vcc, 0, v13
v_mov_b32 v17, 0x3f80
v_lshlrev_b32 v17, v14, v17
v_cndmask_b32 v{C}, 0, v17, vcc
v_subrev_u32 v16, 2, v13
v_cmp_le_u32 vcc, 3, v16
v_mov_b32 v17, 1
v_mov_b32 v16, 0x3f803f80
v_cndmask_b32 v{m}, 0, v17, vcc
v_lshlrev_b32 v18, 2, v0
v_add_u32 v18, {LC}, v18
v_cmp_gt_u32 vcc, 128, v0
s_mov_b64 exec, vcc
s_cbranch_execz B_noc
ds_write_b32 v18, v16
B_noc:
s_mov_b64 exec, -1
v_add_u32 v8, {LW}, v3
s_waitcnt vmcnt(0)
ds_write_b128 v8, v[100:103]
ds_write_b128 v8, v[104:107] offset:8192
s_cmp_ge_u32 s{w}, 4
s_cbranch_scc1 B_round
ds_write_b128 v8, v[108:111] offset:16384'''.format(C=COEF,m=vDAm,LC=L_CONST,LW=L_W,w=sWave))
    a('B_round:')
    stamp(a,opt,1)
    a('''v_and_b32 v44, 1, v{t}
v_add_u32 v44, s{i0}, v44
v_lshrrev_b32 v45, 16, v{tab}
s_add_u32 s3, s{i0}, s{wd}
v_min_u32 v46, s3, v45
v_and_b32 v47, 0xffff, v{tab}
v_lshrrev_b32 v48, 1, v{t}
v_mul_u32_u24 v48, 640, v48
v_add3_u32 v47, v47, v48, v44
v_mul_u32_u24 v47, 48, v47'''.format(t=vTid,i0=sI0,tab=vTab,wd=sWd))
    for j in range(J):
        a('v_cmp_lt_u32 %s, v44, v46\nv_add_u32 v44, 2, v44',sr(sEX+2*j,2))
    for j in range(J):
        a('s_mov_b64 exec, %s\ns_cbranch_execz B_ld_done\nbuffer_load_dwordx4 %s, v47, %s, s%d offen offset:%d',sr(sEX+2*j,2),vr(4*j,4),sr(sWS,4),sREC,96*j)
    a('B_ld_done:\ns_mov_b64 exec, -1')
    a('''v_lshlrev_b32 v49, 4, v{t}
v_add_u32 v50, {DA}, v49
v_mov_b32 v52, 0
v_mov_b32 v53, 0
v_mov_b32 v54, 0
v_mov_b32 v55, 0x7fff0000
ds_write_b128 v50, v[52:55]
ds_write_b128 v50, v[52:55] offset:8192
v_cmp_gt_u32 vcc, {n3}, v{t}
v_mov_b32 v56, 0x7fff0000
v_mov_b32 v57, 0x7fff0000
v_lshlrev_b32 v51, 3, v{t}
v_add_u32 v51, {SRC}, v51
s_mov_b64 exec, vcc
ds_write_b128 v50, v[52:55] offset:16384
v_cmp_gt_u32 vcc, {ns}, v{t}
s_mov_b64 exec, vcc
ds_write_b64 v51, v[56:57]
s_mov_b64 exec, -1
v_lshlrev_b32 v58, 2, v{L}
v_add_u32 v58, {CNT}, v58
s_cmp_lg_u32 s{w}, 0
s_cbranch_scc1 B_i1
v_sub_u32 v59, 63, v{L}
ds_write_b32 v58, v59
ds_write_b32 v58, v52 offset:256
v_cmp_eq_u32 vcc, 12, v{L}
v_mov_b32 v59, -1
v_mov_b32 v60, 0x1000
v_cndmask_b32 v59, v59, v60, vcc
v_cmp_gt_u32 vcc, 4, v{L}
s_mov_b64 exec, 0xffff
s_nop 0
v_cndmask_b32 v59, v59, v52, vcc
ds_write_b32 v58, v59 offset:1024
s_mov_b64 exec, -1
B_i1:
s_waitcnt lgkmcnt(0)
s_barrier
v_mov_b32 v59, {MAX}
ds_max_u32 v59, v45
v_mov_b32 v60, 64
s_waitcnt vmcnt(0)'''.format(t=vTid,DA=L_DA,n3=(STEPCAP*64-16384)//16,ns=STEPCAP+8*PAD,SRC=L_SRC,L=vLane,CNT=L_CNT,w=sWave,MAX=L_MAX))
    assert (STEPCAP*64-16384)//16>448 and 448<STEPCAP+8*PAD<=(STEPCAP*64-16384)//16
    stamp(a,opt,2)
    a('s_mov_b32 s3, %d',L_CNT)
    for j in range(J):
        a('s_mov_b64 exec, %s\ns_cbranch_execz B_c_done\nv_lshrrev_b32 v%d, 16, v%d\nv_lshl_add_u32 v%d, v%d, 2, s3\nds_add_rtn_u32 v%d, v%d, v60',
          sr(sEX+2*j,2),36+j,4*j+3,36+j,36+j,28+j,36+j)
    a('''B_c_done:
s_mov_b64 exec, -1
s_waitcnt lgkmcnt(0)
s_barrier
ds_read_b32 v61, v58
ds_read_b32 v62, v59
s_mul_i32 s3, s{w}, 5
v_mov_b32 v63, 0
s_waitcnt lgkmcnt(0)
v_readfirstlane_b32 s{mx}, v62'''.format(w=sWave,mx=sMax))
    for i in range(5):
        a('v_readlane_b32 s%d, v61, s3\ns_add_u32 s3, s3, 1\ns_nop 0\nv_cmp_gt_u32 vcc, s%d, v61\ns_nop 1\nv_addc_co_u32 v63, vcc, 0, v63, vcc',sT,sT)
    a('''ds_add_u32 v58, v63 offset:256
s_waitcnt lgkmcnt(0)
s_barrier
v_cmp_gt_u32 vcc, 40, v{L}
ds_read_b32 v63, v58 offset:256
s_waitcnt lgkmcnt(0)
v_cndmask_b32 v63, v{L}, v63, vcc
v_lshlrev_b32 v63, 2, v63
ds_permute_b32 v64, v63, v61
v_and_b32 v65, 1, v{L}
v_cmp_eq_u32 vcc, 0, v65
s_waitcnt lgkmcnt(0)
v_lshrrev_b32 v66, 6, v64
v_and_b32 v64, 63, v64
v_sub_u32 v64, 63, v64
v_mov_b32_dpp v67, v66 quad_perm:[0,0,2,2] row_mask:0xf bank_mask:0xf
v_cndmask_b32 v68, 0, v66, vcc'''.format(L=vLane))
    scan(a,68)
    a('''v_sub_u32 v69, v68, v67
v_readlane_b32 s3, v68, 63
v_lshl_add_u32 v69, v69, 1, v65
v_lshlrev_b32 v70, 2, v64
v_add_u32 v70, {NB}, v70
ds_write_b32 v70, v69
v_cmp_eq_u32 vcc, 0, v67
v_mul_u32_u24 v64, {PROW}, v64
v_mov_b32 v70, 0x100000
s_add_u32 s3, s3, 7
s_lshr_b32 s3, s3, 3
v_cndmask_b32 v64, v64, v70, vcc
v_cndmask_b32 v{pend}, v68, v70, vcc
ds_write_b32 v58, v64 offset:768
s_max_u32 s{Ls}, s3, 16
s_cmp_le_u32 s{Ls}, {cap}
s_cbranch_scc1 B_fit
s_cmp_gt_u32 s{wd}, 2
s_cselect_b32 s{wd}, 2, 1
s_waitcnt lgkmcnt(0)
s_barrier
s_branch B_round
B_fit:
v_cvt_f32_u32 v71, s{Ls}
v_rcp_f32 v71, v71
s_mov_b32 s{T}, {DA}
v_mul_f32 v72, 0.5, v71'''.format(NB=L_NB,PROW=PROW,pend=vPend,Ls=sL,cap=STEPCAP//8,wd=sWd,T=sT,DA=L_DA))
    for j in range(J):
        a('s_mov_b64 exec, %s\ns_cbranch_execz B_n_done\nds_read_b32 v%d, v%d offset:%d',sr(sEX+2*j,2),36+j,36+j,L_NB-L_CNT)
    a('B_n_done:\ns_mov_b32 s3, %d\ns_waitcnt lgkmcnt(0)',L_SRC)
    for j in range(J):
        m=4*j
        a('''s_mov_b64 exec, {ex}
s_cbranch_execz B_s_done
v_lshrrev_b32 v73, 6, v{pos}
v_lshl_add_u32 v73, v73, 1, v{nb}
v_lshrrev_b32 v74, 1, v73
v_cvt_f32_u32 v74, v74
v_fma_f32 v74, v74, v71, v72
v_cvt_u32_f32 v74, v74
v_mad_u32_u24 v74, v74, {p2}, v73
v_lshl_add_u32 v74, v74, 2, s3
v_and_b32 v75, 0xffff, v{m3}
v_lshlrev_b32 v75, 10, v75
ds_write_b32 v74, v75
v_lshl_add_u32 v73, v73, 4, s{T}
v_add_u32 v{m3}, {ro}, v47
ds_write_b128 v73, {mv}
v_and_b32 v76, 0xffff0000, v{m0}
v_and_b32 v77, 0xffff0000, v{m1}
v_and_b32 v78, 0xffff0000, v{m2}
ds_write_b128 v73, v[76:79] offset:{ya}'''.format(ex=sr(sEX+2*j,2),pos=28+j,nb=36+j,p2=2*PAD,m0=m,m1=m+1,m2=m+2,m3=m+3,T=sT,ro=96*j+16,mv=vr(m,4),ya=L_YA-L_DA))
    a('B_s_done:\ns_mov_b64 exec, -1')
    a('''s_mul_i32 s{c0}, s{w}, s{L}
s_add_u32 s{en}, s{c0}, s{L}
s_mov_b32 s{cur}, s{c0}
s_cmp_eq_u32 s35, 0
s_cselect_b32 s63, s{en}, 0
s_lshl_b32 s3, s{w}, 2
s_add_u32 s3, s3, 163664
v_lshl_add_u32 v253, v{lane}, 20, s3
s_and_b32 s3, s{L}, 15
s_sub_u32 s{u0}, 16, s3
s_add_u32 s3, s{L}, s{u0}
s_lshr_b32 s3, s3, 4
s_sub_u32 s{it}, s3, 1
s_sub_u32 s3, 16, s{L}
s_lshl_b32 s{bk}, s3, 5
s_mov_b32 s{ph}, 0
s_movk_i32 s{inc}, 512
s_movk_i32 s{inc8}, 128
s_mov_b32 s{wi}, 0
s_mov_b32 s{xo}, 0
s_mov_b32 s{xa}, 0
v_cmp_ge_u32 vcc, s{c0}, v{pend}
v_lshrrev_b32 v80, 2, v{kh}
v_mov_b32 v{lp}, v{LOFF}
v_lshlrev_b32 v{wad}, 4, v{lane}
s_bcnt1_i32_b64 s{p2}, vcc
s_mov_b32 s{p20}, s{p2}
v_add_u32 v{wad}, {LW}, v{wad}
s_lshl_b32 s3, s{p2}, 2
s_add_u32 s3, s3, {ROW}
v_add_u32 v{rp}, s3, v80
s_mul_i32 s3, s{w}, {PAD}
s_add_u32 s3, s3, s{c0}
s_lshl_b32 s3, s3, 3
s_add_u32 s3, s3, {SRC}
v_add_u32 v81, s3, v80
s_lshl_b32 s3, s{c0}, 5
s_add_u32 s3, s3, {DA}
v_add_u32 v82, s3, v{kh}
s_lshl_b32 s{T}, s{u0}, 5
s_sub_u32 s3, s3, s{T}
s_add_u32 s3, s3, 12
v_bfe_u32 v83, v{lane}, 3, 2
v_and_b32 v84, 3, v{lane}
v_lshl_add_u32 v83, v83, 2, v84
v_xor_b32 v83, 8, v83
v_bfe_u32 v84, v{lane}, 2, 1
v_lshl_add_u32 v83, v83, 1, v84
v_lshl_add_u32 v83, v83, 4, s3
v_add_u32 v{rec}, 512, v83
v_mov_b32 v85, {LC}
v_cmp_eq_u32 vcc, 1, v{dam}
s_cmp_gt_u32 s{u0}, 15
s_cselect_b32 s3, 512, 0
v_cndmask_b32 v85, v85, v82, vcc
s_sub_u32 s3, s3, s{T}
s_add_u32 s3, s3, {dYA}
v_add_u32 v{ya}, s3, v82
s_cmp_gt_u32 s{u0}, 14
s_cselect_b32 s3, 512, 0
s_sub_u32 s3, s3, s{T}
v_mad_i32_i24 v{da}, v{dam}, s3, v85
s_cmp_gt_u32 s{u0}, 6
s_cselect_b32 s3, 512, 0
s_sub_u32 s3, s3, s{T}
s_ashr_i32 s3, s3, 2
v_add_u32 v{src}, s3, v81'''.format(c0=sC0,w=sWave,L=sL,en=sEnd,cur=sCur,u0=sU0,it=sIter,bk=sBack,ph=sPhase,inc=sInc,inc8=sInc8,wi=sWinc,xo=sXoff,xa=sXadd,
        pend=vPend,kh=vKh16,lp=vLaneP,LOFF=LOFF,wad=vWad,lane=vLane,p2=sP2,p20=sP20,LW=L_W,ROW=L_ROW,rp=vRowP,PAD=PAD,SRC=L_SRC,DA=L_DA,T=sT,
        rec=vREC,LC=L_CONST,dam=vDAm,dYA=L_YA-L_DA,ya=vYA,da=vDA,src=vSRC))
    for r in range(8):
        a('s_sub_u32 s3, %d, s%d\ns_and_b32 s3, s3, 7\ns_lshl_b32 s3, s3, 3\nv_add_u32 v%d, s3, v81\nv_mov_b32 v%d, v%d',r+15+16,sU0,F0+2*r,F0+2*r+1,LOFF)
    a('v_mov_b32 v%d, v%d\ns_waitcnt lgkmcnt(0)\ns_barrier',F0+17,LOFF)
    stamp(a,opt,3)
    e=Asm()
    e('ds_read_b32 v%d, v81',F0+16)
    e('ds_read_b32 v86, v83\nds_read_b32 v%d, v%d',vRecA,vREC)
    for r in range(8): e('ds_read_b32 v%d, v%d offset:8',F0+2*r,F0+2*r)
    e('ds_read_b128 %s, v85\nds_read_b128 %s, v82 offset:%d\ns_waitcnt lgkmcnt(10)',vr(ACC+8,4),vr(Y0,4),L_YA-L_DA)
    for l in xloads(ACC+4,F0+16): e(l)
    e('v_add_u32 v86, v%d, v86\nv_add_u32 v%d, v%d, v%d',vKh16,vRecA,vKh16,vRecA)
    e('buffer_load_dwordx4 %s, v86, %s, s%d offen\nbuffer_load_dwordx4 %s, v%d, %s, s%d offen',vr(EA,4),sr(sWS,4),sREC,vr(ACC,4),vRecA,sr(sWS,4),sREC)
    e('s_waitcnt lgkmcnt(0)')
    for r in range(8):
        for l in xloads(X0+4*r,F0+2*r): e(l)
    e('ds_read_b128 %s, v85 offset:32\nds_read_b32 v%d, v81 offset:72',vr(D,4),IDX)
    for l in perms(ACC+8): e(l)
    for i in range(3): e('v_mov_b32 v%d, v%d',Y0+4+i,Y0+i)
    for l in nextseg(): e(l)
    def cpy(m): return 's_mov_b64 exec, %s\n'%sr(m,2)+''.join('v_mov_b32 v%d, v%d\n'%(EA+i,ACC+i) for i in range(4))+'s_mov_b64 exec, -1'
    mF=['v_mfma_f32_32x32x16_bf16 %s, %s, %s, 0'%(vr(F0+16*b,16),vr(COEF,4),vr(ACC+4,4)) for b in range(2)]
    e('s_cmp_gt_u32 s%d, 8\ns_cbranch_scc1 B_entB',sU0)
    eA=Asm()
    for p in range(5): eA(wread(p,1,24*p+4)); eA(wread(p,0,park(p,0)))
    eA('s_waitcnt vmcnt(32) lgkmcnt(0)')
    for p in range(5): eA(mfR(p,1,24*p+4))
    for p in range(5): eA(mfR(p,0,park(p,0)))
    eA(mF[0]); eA(mF[1]); eA(cpy(sMhi)); eA('s_nop 7\ns_waitcnt vmcnt(0)\ns_cmp_le_u32 s%d, 4\ns_cbranch_scc1 B_go',sU0)
    for p in range(5): eA(wread(p,1,park(p,8)))
    eA('s_branch B_go')
    eB=Asm()
    pk=lambda p: W4 if p==4 else 24*(p+1)+20
    for p in range(5): eB(wread(p,0,24*p+16)); eB(wread(p,1,pk(p)))
    eB('s_waitcnt vmcnt(32) lgkmcnt(0)'); eB(cpy(sMhi)); eB('s_nop 1')
    for p in range(5): eB(mfR(p,0,24*p+16))
    for p in range(5): eB(mfR(p,1,pk(p)))
    eB(mF[0]); eB(mF[1]); eB(cpy(sMlo)); eB('s_nop 7\ns_waitcnt vmcnt(0)\ns_cmp_le_u32 s%d, 12\ns_cbranch_scc1 B_go',sU0)
    for p in range(5): eB(wread(p,0,park(p,0)))
    for x in (eA,eB): check_seq(e.lines+x.lines+step(0,True),'entry')
    a.lines+=e.lines+eA.lines; a('B_entB:'); a.lines+=eB.lines
    a('B_go:\ns_waitcnt lgkmcnt(0)')
    stamp(a,opt,4)
    for u in range(1,16): a('s_cmp_eq_u32 s%d, %d\ns_cbranch_scc1 B_M%d',sU0,u,u)
    a('s_branch B_M0')
    a('.p2align 6')
    for u in range(16):
        a('B_N%d:',u); a('\n'.join(step(u,False))); a('s_cbranch_scc1 B_FL%d',u)
        check_seq(step((u-1)&15,False)+step(u,False)+step((u+1)&15,False),'N%d'%u)
    a('s_branch B_N0')
    for u in range(16):
        a('B_M%d:',u); a('\n'.join(step(u,True))); a('s_cbranch_scc0 B_N%d',(u+1)&15)
        a('B_FL%d:',u); a('\n'.join(flush(u)))
        if u<15: a('s_cbranch_scc1 B_exit'); a('\n'.join(nextseg()))
    a('s_cbranch_scc0 B_seg0\ns_cmp_eq_u32 s%d, 1\ns_cbranch_scc1 B_exit',sPhase)
    if opt.get('dbg'): a('s_memrealtime s[80:81]')
    a('\n'.join(restart()))
    a('B_seg0:'); a('\n'.join(nextseg())); a('s_branch B_M0')
    check_seq(step(15,False)+flush(15)+restart()+nextseg()+step(0,True),'restart')
    for b in range(2): a('\n'.join(addold(b)))
    a('B_exit:')
    stamp(a,opt,6)
    a('''s_add_u32 s{i0}, s{i0}, s{wd}
s_cmp_ge_u32 s{i0}, s{mx}
s_cbranch_scc1 B_gemm
s_waitcnt vmcnt(0) lgkmcnt(0)
s_nop 7
s_barrier
s_branch B_round'''.format(i0=sI0,wd=sWd,mx=sMax))
    gemm(a,opt)
    a('B_end:\ns_endpgm')

def gemm(a,opt):
    G=Asm(); OA=80; RB=124; NR=7
    G('''B_gemm:
s_waitcnt lgkmcnt(0)
s_mul_i32 s3, s{w}, 20480
s_add_u32 s3, s3, {WF}
v_lshlrev_b32 v{t}, 4, v{L}
s_nop 7'''.format(w=sWave,WF=WF,t=vTmp,L=vLane))
    for s in range(20):
        G('buffer_load_dwordx4 %s, v%d, %s, s3 offen offset:%d',vr(4*s,4),vTmp,sr(sWS,4),(s&3)*1024)
        if s&3==3: G('s_add_u32 s3, s3, 4096')
    Pa,Pb0,Pb1,Oa,Ob0,Ob1=ACC,ACC+1,ACC+2,ACC+3,ACC+4,ACC+5
    G('''v_and_b32 v{x}, 15, v{L}
v_lshrrev_b32 v{y}, 4, v{L}
v_mul_u32_u24 v{Pa}, {PROW}, v{x}
v_lshl_add_u32 v{Pa}, v{y}, 4, v{Pa}
s_lshl_b32 s3, s{n0}, 10
s_lshl_b32 s{T}, s{w}, 5
s_add_u32 s3, s3, s{T}
v_lshl_add_u32 v{z}, v{y}, 3, s3
v_lshl_add_u32 v{Oa}, v{x}, 10, v{z}
v_and_b32 v{x}, 7, v{L}
v_add_u32 v{x}, 32, v{x}
v_mul_u32_u24 v{Pb0}, {PROW}, v{x}
v_lshl_add_u32 v{Pb0}, v{y}, 4, v{Pb0}
v_lshl_add_u32 v{Ob0}, v{x}, 10, v{z}
v_cmp_gt_u32 vcc, s{nn}, v{x}
v_mov_b32 v{z}, 0x7fff0000
v_bfe_u32 v{y}, v{L}, 3, 1
v_cndmask_b32 v{Ob0}, v{z}, v{Ob0}, vcc
v_mul_u32_u24 v{x}, 768, v{y}
v_add_u32 v{Pb1}, v{Pb0}, v{x}
v_lshl_add_u32 v{Ob1}, v{y}, 8, v{Ob0}
v_lshl_or_b32 v{Ob0}, v{y}, 30, v{Ob0}
s_barrier'''.format(x=ACC+6,y=ACC+7,z=ACC+8,L=vLane,Pa=Pa,Pb0=Pb0,Pb1=Pb1,Oa=Oa,Ob0=Ob0,Ob1=Ob1,PROW=PROW,n0=sN0,T=sT,w=sWave,nn=sNN))
    stamp(G,opt,7)
    t0=[(0,Pa,0),(1,Pa,16*PROW),(2,Pb0,0)]
    t1=[(3+3*t+j,Pa,16*PROW*t+512+768*j) for t in range(2) for j in range(3)]+[(9,Pb1,512),(10,Pb0,512+1536)]
    ops=[(s,ac,ad,off+64*s) for s in range(8) for ac,ad,off in t0]+[(8+s,ac,ad,off+64*s) for s in range(12) for ac,ad,off in t1]
    rd=lambda i:'ds_read_b128 %s, v%d offset:%d'%(vr(RB+4*(i%NR),4),ops[i][2],ops[i][3])
    for i in range(NR-1): G(rd(i))
    last=-1; sig=[]
    for c in range(12):
        r=OA+c; g=X0+c
        sig+=['v_mul_f32 v%d, 0xbfb8aa3b, v%d'%(g,r),'v_exp_f32 v%d, v%d'%(g,g),'v_add_f32 v%d, 1.0, v%d'%(g,g),'v_rcp_f32 v%d, v%d'%(g,g)]
    sig=[sig[4*c+k] for k in range(4) for c in range(12)]
    st=lambda d,ad,off,so='0':'buffer_store_dwordx2 %s, v%d, %s, %s offen offset:%d'%(vr(d,2),ad,sr(sOUT,4),so,off)
    for t in range(3):
        d=X0+12+2*t
        sig+=['v_cvt_pk_bf16_f32 v%d, v%d, v%d'%(d,OA+4*t,OA+4*t+1),'v_cvt_pk_bf16_f32 v%d, v%d, v%d'%(d+1,OA+4*t+2,OA+4*t+3)]
    G('s_movk_i32 s3, 0x4000')
    for i,(s,ac,ad,off) in enumerate(ops):
        if i+NR-1<len(ops): G(rd(i+NR-1))
        w='lgkmcnt(%d)'%min(NR-1,len(ops)-1-i)
        if s!=last: w='vmcnt(%d) '%(19-s)+w; last=s
        G('s_waitcnt '+w)
        acc=vr(OA+4*ac,4)
        G('v_mfma_f32_16x16x32_bf16 %s, %s, %s, %s',acc,vr(4*s,4),vr(RB+4*(i%NR),4),'0' if s in(0,8) else acc)
        if i>=28 and sig: G(sig.pop(0))
    for t in range(3): G(st(X0+12+2*t,Oa if t<2 else Ob0,0,'s3' if t==1 else '0'))
    stamp(G,opt,8)
    for n,(ac,ad,off) in enumerate(t1):
        gt=X0+4*(n//3); r=OA+4*ac
        for k in range(4): G('v_mul_f32 v%d, v%d, v%d',r+k,r+k,gt+k)
        G('v_cvt_pk_bf16_f32 v%d, v%d, v%d\nv_cvt_pk_bf16_f32 v%d, v%d, v%d',r,r,r+1,r+1,r+2,r+3)
        if n<6: G(st(r,Oa,256*(1+n%3),'s3' if n>=3 else '0'))
        else: G(st(r,Ob1 if n==6 else Ob0,256 if n==6 else 768))
    check_seq(G.lines,'gemm')
    a.lines+=G.lines
    if opt.get('dbg'):
        a('s_waitcnt vmcnt(0)'); stamp(a,opt,9)
        a('s_lshl_b32 s3, s2, 3\ns_add_u32 s3, s3, s%d\ns_lshl_b32 s3, s3, 6\ns_add_u32 s3, s3, %d\nv_mov_b32 v20, 0',sWave,STAMP+0x10000)
        for i in range(10): a('v_mov_b32 v%d, s%d',i,70+2*i)
        a('v_mov_b32 v10, s%d\ns_sub_u32 s4, s94, s92\nv_mov_b32 v11, s4',sL)
        for i in range(3): a('buffer_store_dwordx4 %s, v20, %s, s3 offen offset:%d',vr(4*i,4),sr(sWS,4),16*i)
```

```python
import sys
from asmlib import *
from kA import *
from kB import *
NAME='gather_scatter__tensor_product_equiv_equiformer__graph'
def desc(n,v,s=102):
    return '''.p2align 6
.amdhsa_kernel %s
  .amdhsa_next_free_vgpr %d
  .amdhsa_next_free_sgpr %d
  .amdhsa_accum_offset %d
  .amdhsa_group_segment_fixed_size 0
  .amdhsa_kernarg_size 96
  .amdhsa_user_sgpr_count 2
  .amdhsa_user_sgpr_kernarg_segment_ptr 1
  .amdhsa_system_sgpr_workgroup_id_x 1
.end_amdhsa_kernel
'''%(n,v,s,v)
def build(opt):
    hdr=''.join(l for l in open('cdna_kernels/%s.s.ref'%NAME) if l.startswith(';') and '@launch' not in l and 'Override' not in l and 'grid=ceil' not in l)
    a=Asm()
    a('.amdgcn_target "amdgcn-amd-amdhsa--gfx950"\n.text')
    genA(a,opt); genB(a,opt,NAME+'_kernel')
    la='; @launch kernel=sort_kernel grid=(250,1,1) block=(640,1,1) lds=5120\n'
    lb='; @launch kernel=%s_kernel grid=(256,1,1) block=(512,1,1) lds=%d\n'%(NAME,L_END)
    le='; @launch kernel=nop_kernel grid=(256,1,1) block=(64,1,1) lds=0\n'
    ex=''
    if opt.get('nop'):
        a('.globl nop_kernel\n.p2align 8\n.type nop_kernel,@function\nnop_kernel:\ns_endpgm'); ex=desc('nop_kernel',8)
    return (hdr+(le if opt.get('nop')==2 else '')+la*opt.get('na',1)+lb*opt.get('nb',1)+(le if opt.get('nop')==1 else '')
      +a.text()+'.section .rodata,"a"\n'+ex+desc('sort_kernel',56)+desc(NAME+'_kernel',256))
if __name__=='__main__':
    out=sys.argv[1]; opt={}
    for x in sys.argv[2:]:
        k,_,v=x.partition('='); opt[k]=int(v) if v else 1
    t=build(opt)
    if opt.get('strip'):
        L=t.split('\n'); i=L.index('B_N0:'); j=L.index('B_exit:')
        pat={1:('buffer_load_dword ',),2:('ds_read_b128 v[21','ds_read_b128 v[22'),3:('v_mfma',),4:('v_fmac','v_mul_f32'),5:('ds_pk',),6:('buffer_load_dwordx4',)}[opt['strip']]
        t='\n'.join(L[:i]+[l for l in L[i:j] if not l.strip().startswith(pat)]+L[j:])
    open(out,'w').write(t)
```

```python
import sys
from asmlib import *
from kA import *
from kB import *
NAME='gather_scatter__tensor_product_equiv_equiformer__graph'
def desc(n,v,s=102):
    return '''.p2align 6
.amdhsa_kernel %s
  .amdhsa_next_free_vgpr %d
  .amdhsa_next_free_sgpr %d
  .amdhsa_accum_offset %d
  .amdhsa_group_segment_fixed_size 0
  .amdhsa_kernarg_size 96
  .amdhsa_user_sgpr_count 2
  .amdhsa_user_sgpr_kernarg_segment_ptr 1
  .amdhsa_system_sgpr_workgroup_id_x 1
.end_amdhsa_kernel
'''%(n,v,s,v)
def build(opt):
    hdr=''.join(l for l in open('cdna_kernels/%s.s.ref'%NAME) if l.startswith(';') and '@launch' not in l and 'Override' not in l and 'grid=ceil' not in l)
    a=Asm()
    a('.amdgcn_target "amdgcn-amd-amdhsa--gfx950"\n.text')
    genA(a,opt); genB(a,opt,NAME+'_kernel')
    la='; @launch kernel=sort_kernel grid=(250,1,1) block=(640,1,1) lds=5120\n'
    lb='; @launch kernel=%s_kernel grid=(256,1,1) block=(512,1,1) lds=%d\n'%(NAME,L_END)
    le='; @launch kernel=nop_kernel grid=(256,1,1) block=(64,1,1) lds=0\n'
    ex=''
    if opt.get('nop'):
        a('.globl nop_kernel\n.p2align 8\n.type nop_kernel,@function\nnop_kernel:')
        if 'rd' in opt:
            a('''s_cmp_lg_u32 s2, 0
s_cbranch_scc1 N_end
s_load_dwordx2 s[4:5], s[0:1], 88
s_waitcnt lgkmcnt(0)
s_add_u32 s4, s4, %d
s_addc_u32 s5, s5, 0
s_load_dword s6, s[4:5], 0
s_load_dword s7, s[4:5], %d
s_waitcnt lgkmcnt(0)
s_sub_u32 s7, s7, s6
s_add_u32 s7, s7, 10000
s_min_u32 s7, s7, 30000
N_spin:
s_memrealtime s[8:9]
s_waitcnt lgkmcnt(0)
s_sub_u32 s8, s8, s6
s_cmp_lt_u32 s8, s7
s_cbranch_scc1 N_spin
N_end:''',STAMP,0 if opt['rd']<0 else 0x10000+4*opt['rd'])
        a('s_endpgm'); ex=desc('nop_kernel',8)
    return (hdr+(le if opt.get('nop')==2 else '')+la*opt.get('na',1)+lb*opt.get('nb',1)+(le if opt.get('nop')==1 else '')
      +a.text()+'.section .rodata,"a"\n'+ex+desc('sort_kernel',56)+desc(NAME+'_kernel',256))
if __name__=='__main__':
    out=sys.argv[1]; opt={}
    for x in sys.argv[2:]:
        k,_,v=x.partition('='); opt[k]=int(v) if v else 1
    t=build(opt)
    if opt.get('strip'):
        L=t.split('\n'); i=L.index('B_N0:'); j=L.index('B_exit:')
        pat={1:('buffer_load_dword ',),2:('ds_read_b128 v[21','ds_read_b128 v[22'),3:('v_mfma',),4:('v_fmac','v_mul_f32'),5:('ds_pk',),6:('buffer_load_dwordx4',)}[opt['strip']]
        t='\n'.join(L[:i]+[l for l in L[i:j] if not l.strip().startswith(pat)]+L[j:])
    open(out,'w').write(t)
```

```python
from asmlib import *
TAB=0; WF=0x40000; WR=WF+160*1024; REC=0x80000; WSSZ=REC+160000*48; STAMP=0x900000
def srd(a,d,b,n,stride=0):
    a('s_mov_b32 s%d, s%d',d,b)
    if stride: a('s_and_b32 s%d, s%d, 0xffff\ns_or_b32 s%d, s%d, 0x%x',d+1,b+1,d+1,d+1,stride<<16)
    else: a('s_and_b32 s%d, s%d, 0xffff',d+1,b+1)
    a('s_mov_b32 s%d, %d\ns_mov_b32 s%d, 0x20000',d+2,n,d+3)
def scan(a,v):
    for sh in (1,2,4,8):
        a('s_nop 1\nv_add_u32_dpp v%d, v%d, v%d row_shr:%d row_mask:0xf bank_mask:0xf',v,v,v,sh)
    a('s_nop 1\nv_add_u32_dpp v%d, v%d, v%d row_bcast:15 row_mask:0xa bank_mask:0xf',v,v,v)
    a('s_nop 1\nv_add_u32_dpp v%d, v%d, v%d row_bcast:31 row_mask:0xc bank_mask:0xf',v,v,v)
def genA(a,opt):
    a('''.globl sort_kernel
.p2align 8
.type sort_kernel,@function
sort_kernel:
s_cmp_ge_u32 s2, 250
s_cbranch_scc1 A_end''')
    if opt.get('dbg'): a('s_memrealtime s[70:71]')
    a('''s_load_dwordx16 s[36:51], s[0:1], 0
s_load_dwordx2 s[52:53], s[0:1], 88
s_mul_i32 s3, s2, 640
v_add_u32 v1, s3, v0
v_lshlrev_b32 v2, 2, v1
v_mul_u32_u24 v3, 6, v1
v_lshlrev_b32 v4, 5, v1
v_lshlrev_b32 v5, 2, v0
v_mov_b32 v6, 0
v_lshrrev_b32 v7, 6, v0
ds_write_b32 v5, v6
v_and_b32 v30, 63, v0
v_readfirstlane_b32 s54, v7
s_waitcnt lgkmcnt(0)''')
    srd(a,4,44,640000); a('buffer_load_dword v8, v2, s[4:7], 0 offen')
    srd(a,8,42,640000); a('buffer_load_dword v9, v2, s[8:11], 0 offen')
    srd(a,12,38,960000)
    a('buffer_load_ushort v10, v3, s[12:15], 0 offen\nbuffer_load_ushort v11, v3, s[12:15], 0 offen offset:2\nbuffer_load_ushort v12, v3, s[12:15], 0 offen offset:4')
    de=opt.get('de')
    if not de:
        srd(a,16,40,5120000)
        a('buffer_load_dwordx4 v[16:19], v4, s[16:19], 0 offen\nbuffer_load_dwordx4 v[20:23], v4, s[16:19], 0 offen offset:16')
    srd(a,20,52,WSSZ if not opt.get('dbg') else STAMP+0x100000)
    npre=0
    if opt.get('apf'):
        srd(a,28,36,10240000)
        a('v_lshlrev_b32 v13, 6, v1\nbuffer_load_dword v40, v13, s[28:31], 0 offen'); npre=1
    a('''s_barrier
s_mov_b32 s55, 214749
s_waitcnt vmcnt(%d)
@1
v_mul_u32_u24 v13, s55, v8
v_lshrrev_b32 v13, 23, v13
v_lshlrev_b32 v14, 2, v13
v_mov_b32 v6, 1
ds_add_rtn_u32 v15, v14, v6
s_movk_i32 s55, 625
v_mad_u32_u24 v13, v13, s55, 15
v_lshrrev_b32 v13, 4, v13
v_sub_u32 v13, v8, v13
v_lshl_or_b32 v13, v0, 6, v13''',(4 if de else 6)+npre)
    a('''s_mov_b32 s56, 0
s_cmp_lg_u32 s54, 1
s_cbranch_scc1 A_now
s_cmp_ge_u32 s2, 180
s_cbranch_scc1 A_now
s_mov_b32 s56, 1
s_mov_b32 s27, 0x20000
s_cmp_ge_u32 s2, 160
s_cbranch_scc1 A_rad
s_mul_i32 s57, s2, 205
s_lshr_b32 s57, s57, 12
s_mul_i32 s58, s57, 20
s_sub_u32 s58, s2, s58
s_cmp_lt_u32 s58, 8
s_cselect_b32 s24, s48, s50
s_cselect_b32 s25, s49, s51
s_mov_b32 s26, 0x18000
s_cselect_b32 s26, 0x10000, s26
s_cselect_b32 s59, 0, 8
s_sub_u32 s58, s58, s59
s_and_b32 s25, s25, 0xffff
s_lshl_b32 s58, s58, 13
s_lshl_b32 s57, s57, 5
s_add_u32 s58, s58, s57
v_lshrrev_b32 v31, 4, v30
v_lshlrev_b32 v31, 11, v31
v_and_b32 v32, 15, v30
v_lshl_add_u32 v31, v32, 1, v31
s_movk_i32 s60, 256
s_branch A_wld
A_rad:
s_sub_u32 s57, s2, 160
s_mul_i32 s58, s57, 52
s_lshr_b32 s58, s58, 8
s_mul_i32 s59, s58, 5
s_sub_u32 s57, s57, s59
s_lshl_b32 s57, s57, 8
s_and_b32 s59, s58, 1
s_lshl_b32 s59, s59, 1
s_lshr_b32 s58, s58, 1
s_lshl_b32 s58, s58, 7
s_add_u32 s58, s58, s57
s_add_u32 s58, s58, s59
s_mov_b32 s24, s46
s_and_b32 s25, s47, 0xffff
s_mov_b32 s26, 20480
v_lshrrev_b32 v31, 5, v30
v_mul_u32_u24 v31, 10240, v31
v_and_b32 v32, 31, v30
v_lshl_add_u32 v31, v32, 2, v31
s_movk_i32 s60, 1280
A_wld:''')
    for i in range(8):
        a('buffer_load_ushort v%d, v31, s[24:27], s58 offen\ns_add_u32 s58, s58, s60',48+i)
    a('''A_now:
s_waitcnt lgkmcnt(0)
s_barrier
v_lshlrev_b32 v5, 4, v30
ds_read_b128 v[24:27], v5
s_waitcnt lgkmcnt(0)
v_add_u32 v28, v24, v25
v_add3_u32 v28, v28, v26, v27
v_mov_b32 v29, v28''')
    scan(a,28)
    a('''v_sub_u32 v32, v28, v29
v_add_u32 v33, v32, v24
v_add_u32 v34, v33, v25
v_add_u32 v35, v34, v26
ds_write_b128 v5, v[32:35] offset:4096
ds_read_b32 v14, v14 offset:4096
s_cmp_lg_u32 s54, 0
s_cbranch_scc1 A_notab
v_lshl_or_b32 v24, v24, 16, v32
v_lshl_or_b32 v25, v25, 16, v33
v_lshl_or_b32 v26, v26, 16, v34
v_lshl_or_b32 v27, v27, 16, v35
s_lshl_b32 s57, s2, 10
buffer_store_dwordx4 v[24:27], v5, s[20:23], s57 offen
A_notab:
@4
s_waitcnt vmcnt(0)
@2
v_xor_b32 v28, 0x8000, v11
v_xor_b32 v29, 0x8000, v12
v_xor_b32 v31, 0x8000, v10
v_lshl_or_b32 v44, v10, 16, v28
v_lshl_or_b32 v45, v11, 16, v29
v_lshl_or_b32 v46, v12, 16, v31
v_lshl_or_b32 v47, v13, 16, v9
s_waitcnt lgkmcnt(0)
''')
    if de: a('''v_add_lshl_u32 v14, v14, v15, 4
ds_write_b128 v14, v[44:47] offset:5120
v_lshlrev_b32 v14, 4, v0
s_mul_i32 s57, s2, 10240
s_add_u32 s57, s57, %d
s_waitcnt lgkmcnt(0)
s_barrier
@3
ds_read_b128 v[44:47], v14 offset:5120
s_waitcnt lgkmcnt(0)
buffer_store_dwordx4 v[44:47], v14, s[20:23], s57 offen''',REC)
    else: a('''v_add_u32 v14, v14, v15
v_mul_u32_u24 v14, 48, v14
ds_write_b128 v14, v[44:47] offset:5120
ds_write_b128 v14, v[16:19] offset:5136
ds_write_b128 v14, v[20:23] offset:5152
v_lshlrev_b32 v14, 4, v0
s_mul_i32 s57, s2, 30720
s_add_u32 s57, s57, %d
s_add_u32 s58, s57, 10240
s_add_u32 s59, s57, 20480
s_waitcnt lgkmcnt(0)
s_barrier
@3
ds_read_b128 v[44:47], v14 offset:5120
ds_read_b128 v[16:19], v14 offset:15360
ds_read_b128 v[20:23], v14 offset:25600
s_waitcnt lgkmcnt(2)
buffer_store_dwordx4 v[44:47], v14, s[20:23], s57 offen
s_waitcnt lgkmcnt(1)
buffer_store_dwordx4 v[16:19], v14, s[20:23], s58 offen
s_waitcnt lgkmcnt(0)
buffer_store_dwordx4 v[20:23], v14, s[20:23], s59 offen
''',REC)
    a('''s_cmp_eq_u32 s56, 0
s_cbranch_scc1 A_fin
s_lshl_b32 s57, s2, 10
s_add_u32 s57, s57, %d
v_lshl_or_b32 v36, v49, 16, v48
v_lshl_or_b32 v37, v51, 16, v50
v_lshl_or_b32 v38, v53, 16, v52
v_lshl_or_b32 v39, v55, 16, v54
buffer_store_dwordx4 v[36:39], v5, s[20:23], s57 offen
A_fin:''',WF)
    if opt.get('dbg'):
        a('''s_waitcnt vmcnt(0)
@0
s_waitcnt lgkmcnt(0)
v_mov_b32 v0, s70
v_mov_b32 v1, s72
s_mul_i32 s57, s2, 10
s_add_u32 s57, s57, s54
s_lshl_b32 s57, s57, 3
s_add_u32 s57, s57, %d
v_mov_b32 v2, 0
buffer_store_dwordx2 v[0:1], v2, s[20:23], s57 offen''',STAMP)
    a('A_end:\ns_endpgm')
    a.lines=[('    s_memrealtime s[72:73]\n    s_waitcnt lgkmcnt(0)' if l.strip()[0]=='@' else l) for l in a.lines if l.strip()[0]!='@' or (opt.get('dbg') and int(l.strip()[1])==opt.get('ast',0))]
```

```python
from asmlib import *
from kA import *
PROW=2848
L_P=0; L_W=40*PROW; STEPCAP=432
L_DA=L_W+20480; L_YA=L_DA+STEPCAP*32; L_CONST=L_YA+STEPCAP*32
L_CNT=L_CONST+512; L_RANK=L_CNT+256; L_NB=L_RANK+256; L_ROW=L_NB+256; L_MAX=L_ROW+256; L_FLAG=L_MAX+16; L_END=L_FLAG+48
assert L_END<=163840 and L_CONST%16==0
J=7
F0=120; X0=152; ACC=184; IDX=206; LOFF=207; COEF=208; D=212; Y0=216; EA=224; W4=228; SEL=232
vDA=235; vYA=236; vXo=237; vREC=238; vDAm=239; vWad=240; vRecA=241; T0=242; T1=243
vRowP=244; vRow=245; vPend=246; vLaneP=247; vKh16=248; vTid=249; vTab=250; vLane=251; vTmp=252; vFlag=253; vJunk=254; vPat=255
sX=8; sWS=12; sOUT=16; sEX=20
sWave=34; sI0=35; sWd=36; sMax=37; sL=38; sU0=39; sC0=40; sCur=41; sEnd=42; sCnt=43; sP2=44; sP20=45
sPhase=46; sIter=47; sInc=48; sInc8=49; sWinc=50; sXoff=51; sXadd=52; sBack=53; sMhi=54; sMlo=56
sTile=58; sN0=59; sNN=60; sREC=61; sT=62; sThr=63; sRet=66; sFl=68
def Rr(p,pi,u):
    return 24*p+(((u+8)&15) if pi==0 else (16+u if u<8 else u))
def park(p,u):
    return W4 if p==4 else 24*(p+1)+(0 if u==0 else 8)
def mfR(p,pi,w): d=24*p+8*pi; return 'v_mfma_f32_32x32x16_bf16 %s, %s, %s, 0'%(vr(d,16),vr(EA,4),vr(w,4))
def wread(p,pi,dst): return 'ds_read_b128 %s, v%d offset:%d'%(vr(dst,4),vWad,(pi*5+p)*1024)
def perms(d=D):
    return ['v_perm_b32 v%d, v%d, v%d, v%d'%(COEF+1+j,d+j,d+(j+2)%3,SEL+j) for j in range(3)]
def fmas(u,pi,first):
    fb=F0+16*(u&1)+8*pi; y=Y0+4*(u&1); t=T0+pi
    def op(k,a,b): return ('v_mul_f32' if first else 'v_fmac_f32')+' v%d, v%d, v%d'%(ACC+2*k+pi,a,b)
    o=[op(0,fb,Rr(0,pi,u)),op(1,fb+1,Rr(1,pi,u)),'v_mul_f32 v%d, v%d, v%d'%(t,fb,Rr(2,pi,u))]
    o+=[op(3+3*j,fb+2+j,Rr(3,pi,u)) for j in range(3)]
    o+=[op(2+3*j,t,y+j) for j in range(3)]
    o+=[op(4+3*j,fb+5+j,Rr(4,pi,u)) for j in range(3)]
    return o
def xloads(dst,idx=IDX):
    return ['global_load_dword v%d, v%d, s[4:5] offset:%d'%(dst+j,idx,256*j) for j in range(4)]
def step(u,first):
    o=[]; burst=u in(0,8); pa=1 if u==0 else 0
    f=fmas(u,pa,first)+fmas(u,1-pa,first)
    xr=X0+4*((u+1)&7)
    mF='v_mfma_f32_32x32x16_bf16 %s, %s, %s, 0'%(vr(F0+16*((u+1)&1),16),vr(COEF,4),vr(xr,4))
    pre=perms()
    if u==7: pre.append('v_add_u32 v%d, s%d, v%d'%(vXo,sXadd,vXo))
    pre.append('v_add_u32 v%d, v%d, v%d'%(IDX,Y0+4*(u&1)+3,vXo))
    if u==14: pre.append('v_mad_i32_i24 v%d, v%d, s%d, v%d'%(vDA,vDAm,sInc,vDA))
    if u==15: pre.append('v_add_u32 v%d, s%d, v%d'%(vYA,sInc,vYA))
    if u==12: pre.append('v_add_u32 v%d, s%d, v%d'%(vWad,sWinc,vWad))
    tail=['ds_read_b128 %s, v%d offset:%d'%(vr(D,4),vDA,((u+2)&15)*32),
          'ds_read_b128 %s, v%d offset:%d'%(vr(Y0+4*((u+1)&1),4),vYA,((u+1)&15)*32)]
    if (u&7) in (4,5,6):
        nb=8 if u<8 else 0
        for p in {4:(0,1),5:(2,3),6:(4,)}[u&7]: tail.append(wread(p,1 if nb==8 else 0,park(p,nb)))
    tail+=xloads(xr)
    if burst:
        tail+=['s_mov_b64 exec, %s'%sr(sMhi if u==0 else sMlo,2),eald(EA,vRecA),'s_mov_b64 exec, -1']
        o.append('s_waitcnt vmcnt(28) lgkmcnt(0)')
        for p in range(5):
            o.append(mfR(p,1-pa,park(p,u)))
            if p==0 and u==0:
                o+=['s_sub_u32 s%d, s%d, 1'%(sIter,sIter),'s_cmp_eq_u32 s%d, 0'%sIter,'s_cselect_b32 s%d, s%d, 512'%(sInc,sBack),
                    's_cselect_b32 s%d, 10240, 0'%sWinc,'s_cselect_b32 s%d, 128, 0'%sXadd,
                    'v_add_u32 v%d, s%d, v%d'%(vREC,sInc,vREC),'ds_read_b32 v%d, v%d'%(vRecA,vREC)]
            if p==2: o+=pre
            else: o+=f[:3]; f=f[3:]
        if u==0: o+=['s_waitcnt lgkmcnt(0)','v_add_u32 v%d, v%d, v%d'%(vRecA,vKh16,vRecA)]
    else:
        o+=f[:4]+['s_waitcnt vmcnt(29) lgkmcnt(0)']+pre+f[4:5]; f=f[5:]
    o+=[mF]+tail+['s_sub_u32 s%d, s%d, 1'%(sCnt,sCnt)]+f
    return o
def nextseg():
    return ['v_readlane_b32 s%d, v%d, s%d'%(sT,vPend,sP2),'ds_read_b32 v%d, v%d'%(vRow,vRowP),
            's_min_u32 s%d, s%d, s%d'%(sT,sT,sEnd),'s_sub_u32 s%d, s%d, s%d'%(sCnt,sT,sCur),
            's_sub_u32 s%d, s%d, 1'%(sCnt,sCnt),'s_mov_b32 s%d, s%d'%(sCur,sT)]
def flush(u,lab=True):
    o=['v_add_u32 v%d, v%d, v%d'%(vTmp,vRow,vLaneP),'s_cmp_lt_u32 s%d, s%d'%(sCur,sThr),'s_cbranch_scc1 B_FP%d'%u,
       's_call_b64 %s, B_add%d'%(sr(sRet,2),u&1),'B_FP%d:'%u]
    for k in range(11):
        o.append('v_cvt_pk_bf16_f32 v%d, v%d, v%d'%(ACC+2*k,ACC+2*k,ACC+2*k+1))
        if k>1 and k%2==0: o.append('ds_write2st64_b32 v%d, v%d, v%d offset0:%d offset1:%d'%(vTmp,ACC+2*k-4,ACC+2*k-2,k-2,k-1))
    o+=['v_add_u32 v%d, 8, v%d'%(vRowP,vRowP),'s_add_u32 s%d, s%d, 2'%(sP2,sP2),
        'ds_write_b32 v%d, v%d offset:2560'%(vTmp,ACC+20),'ds_write_b32 v%d, v%d'%(vFlag,vLaneP),'s_cmp_eq_u32 s%d, s%d'%(sCur,sEnd)]
    return o
def addold(b):
    f=F0+16*b
    o=['B_add%d:'%b,'s_lshl_b32 s%d, s%d, 7'%(sFl,sPhase),'s_cmp_eq_u32 s%d, s%d'%(sCur,sEnd),'s_cselect_b32 s%d, s%d, -1'%(sFl,sFl),
       'B_spin%d:'%b,'ds_read_b32 v%d, v%d offset:4'%(f+11,vFlag)]
    o+=['ds_read2st64_b32 %s, v%d offset0:%d offset1:%d'%(vr(f+k,2),vTmp,k,k+1) for k in range(0,10,2)]
    o+=['ds_read_b32 v%d, v%d offset:2560'%(f+10,vTmp),'s_waitcnt lgkmcnt(0)','v_readfirstlane_b32 s%d, v%d'%(sT,f+11),
        's_cmp_lt_i32 s%d, s%d'%(sT,sFl),'s_cbranch_scc1 B_spin%d'%b]
    for k in range(11):
        o+=['v_lshlrev_b32 v%d, 16, v%d'%(f+12+(k&1),f+k),'v_and_b32 v%d, 0xffff0000, v%d'%(f+k,f+k),
            'v_add_f32 v%d, v%d, v%d'%(ACC+2*k,ACC+2*k,f+12+(k&1)),'v_add_f32 v%d, v%d, v%d'%(ACC+2*k+1,ACC+2*k+1,f+k)]
    o.append('s_setpc_b64 %s'%sr(sRet,2))
    return o
def restart():
    o=[wread(p,1,24*p+4) for p in range(5)]
    o+=['s_mov_b32 s%d, 1'%sPhase,'s_mov_b32 s%d, s%d'%(sCur,sC0),'s_sub_u32 s%d, s%d, s%d'%(sT,sP2,sP20),'s_lshl_b32 s%d, s%d, 2'%(sT,sT),
        's_mov_b32 s%d, s%d'%(sP2,sP20),'v_subrev_u32 v%d, s%d, v%d'%(vRowP,sT,vRowP),'v_add_u32 v%d, 128, v%d'%(vLaneP,vLaneP),
        's_lshl_b32 s%d, s%d, 5'%(sT,sEnd),'s_add_u32 s%d, s%d, %d'%(sT,sT,L_YA+12-288),'v_lshl_add_u32 v%d, v%d, 4, s%d'%(T0,vLane,sT),'v_mov_b32 v%d, 0'%T1,
        's_mov_b64 exec, 0x3ffff','ds_write_b32 v%d, v%d'%(T0,T1),'s_mov_b64 exec, -1',
        's_setprio 0','s_waitcnt vmcnt(28) lgkmcnt(0)']
    o+=[mfR(p,1,24*p+4) for p in range(5)]
    return o
def stamp(a,opt,i,fine=0):
    if i in (5,6,7,8) and opt.get('fine',0)!=fine: return
    if opt.get('dbg'):
        if i==opt.get('c0',4): a('s_memtime s[92:93]')
        if i==opt.get('c1',6): a('s_memtime s[94:95]')
        a('s_memrealtime s[%d:%d]\ns_waitcnt lgkmcnt(0)',70+2*i,71+2*i)

OPT={}
def eald(d,ad): return 'buffer_load_dwordx4 %s, v%d, %s, %s offen'%((vr(d,4),ad)+((sr(sX,4),'0') if OPT.get('de') else (sr(sWS,4),'s%d'%sREC)))
K=dict(c0=sC0,w=sWave,L=sL,en=sEnd,cur=sCur,u0=sU0,it=sIter,bk=sBack,ph=sPhase,inc=sInc,wi=sWinc,xo=vXo,xa=sXadd,i0=sI0,thr=sThr,L32=sXoff,
        pend=vPend,kh=vKh16,lp=vLaneP,LOFF=LOFF,wad=vWad,lane=vLane,p2=sP2,p20=sP20,LW=L_W,ROW=L_ROW,rp=vRowP,DA=L_DA,T=sT,
        rec=vREC,LC=L_CONST,dam=vDAm,dYA=L_YA-L_DA,ya=vYA,da=vDA,pat=vPat)
def genB(a,opt,name):
    OPT.clear(); OPT.update(opt); de=opt.get('de'); RS=16 if de else 48
    a('''.globl %s
.p2align 8
.type %s,@function
%s:
s_cmp_ge_u32 s2, 256
s_cbranch_scc1 B_end''',name,name,name)
    stamp(a,opt,0)
    a('''s_load_dwordx2 s[4:5], s[0:1], 0
s_load_dwordx2 s[6:7], s[0:1], 72
s_load_dwordx2 s[64:65], s[0:1], 88
s_load_dwordx2 s[66:67], s[0:1], 16
s_and_b32 s3, s2, 7
s_lshl_b32 s3, s3, 5
s_lshr_b32 s%d, s2, 3
s_add_u32 s%d, s%d, s3''',sTile,sTile,sTile)
    a('''v_mov_b32 v%d, v0
v_and_b32 v%d, 63, v0
v_lshrrev_b32 v1, 6, v0
v_lshrrev_b32 v2, 1, v0
v_readfirstlane_b32 s%d, v1
v_lshlrev_b32 v2, 10, v2
s_lshl_b32 s3, s%d, 2
v_lshlrev_b32 v3, 4, v0
v_mov_b32 v%d, 0
v_cmp_gt_u32 vcc, 500, v0
s_mov_b32 s%d, %d
s_waitcnt lgkmcnt(0)''',vTid,vLane,sWave,sTile,vTab,sREC,REC)
    srd(a,sWS,64,WSSZ if not opt.get('dbg') else STAMP+0x100000)
    a('''s_mov_b64 exec, vcc
buffer_load_dword v%d, v2, %s, s3 offen
s_mov_b64 exec, -1
s_mov_b32 s3, %d
buffer_load_dwordx4 v[100:103], v3, %s, s3 offen
s_add_u32 s3, s3, 8192
buffer_load_dwordx4 v[104:107], v3, %s, s3 offen
s_add_u32 s3, s3, 8192
buffer_load_dwordx4 v[108:111], v3, %s, s3 offen''',vTab,sr(sWS,4),WR,sr(sWS,4),sr(sWS,4),sr(sWS,4))
    npf=0
    def pf(rnd,reg):
        a('''s_and_b32 s3, s2, 7
s_mul_i32 s3, s3, 1250
s_lshr_b32 s%d, s2, 3
s_lshl_b32 s%d, s%d, 7
s_add_u32 s3, s3, s%d
s_add_u32 s3, s3, %d
v_lshrrev_b32 v%d, 2, v%d
v_add_u32 v%d, s3, v%d
v_subrev_u32 v%d, 10000, v%d
v_min_u32 v%d, v%d, v%d
v_and_b32 v%d, 3, v%d
v_lshlrev_b32 v%d, 8, v%d
v_lshl_add_u32 v%d, v%d, 10, v%d
global_load_dword v%d, v%d, s[4:5]''',sT,sT,sT,sT,rnd*4096,reg,vTid,reg,reg,reg+1,reg,reg,reg,reg+1,reg+1,vTid,reg+1,reg+1,reg,reg,reg+1,vJunk,reg)
    def pf2(reg):
        a('''s_mul_i32 s3, s2, 160
v_add_u32 v%d, s3, v%d
v_min_u32 v%d, 39999, v%d
v_lshlrev_b32 v%d, 8, v%d
s_cmp_ge_u32 s%d, 3
s_cbranch_scc1 B_nopf2
global_load_dword v%d, v%d, s[4:5] offset:128
B_nopf2:''',reg,vTid,reg,reg,reg,reg,sWave,vJunk,reg)
    if opt.get('pf',0)&1: pf(0,112); npf=1
    srd(a,sOUT,6,10240000); srd(a,sX,66,5120000)
    a('''s_mul_i32 s3, s%d, 625
s_add_u32 s%d, s3, 15
s_lshr_b32 s%d, s%d, 4
s_add_u32 s3, s3, 640
s_lshr_b32 s3, s3, 4
s_sub_u32 s%d, s3, s%d
s_mov_b32 s%d, 0
s_mov_b32 s%d, %d
s_mov_b32 s%d, 0xffff0000
s_mov_b32 s%d, 0xffff0000
s_mov_b32 s%d, 0xffff
s_mov_b32 s%d, 0xffff''',sTile,sN0,sN0,sN0,sNN,sN0,sI0,sWd,2*J,sMhi,sMhi+1,sMlo,sMlo+1)
    a('v_mov_b32 v4, 0\nv_mov_b32 v5, 0\nv_mov_b32 v6, 0\nv_mov_b32 v7, 0\nv_add_u32 v8, 0x10000, v3')
    for i in range(13): a('ds_write_b128 v%d, v[4:7] offset:%d',3 if i<8 else 8,(i&7)*8192)
    a('v_cmp_gt_u32 vcc, %d, v0\ns_mov_b64 exec, vcc\nds_write_b128 v8, v[4:7] offset:%d\ns_mov_b64 exec, -1',(L_W-13*8192)//16,5*8192)
    a('''v_and_b32 v10, 31, v{L}
v_lshlrev_b32 v{LOFF}, 2, v10
v_lshrrev_b32 v11, 5, v{L}
v_lshlrev_b32 v{kh}, 4, v11
v_bfe_u32 v12, v{L}, 2, 1
v_bfe_u32 v13, v{L}, 3, 1
v_and_b32 v14, 3, v{L}
v_lshl_add_u32 v13, v13, 2, v14
v_bfe_u32 v14, v{L}, 4, 1
v_lshlrev_b32 v14, 4, v14
v_cmp_eq_u32 vcc, v11, v12
v_mov_b32 v15, 8
s_nop 0
v_cndmask_b32 v13, v15, v13, vcc'''.format(L=vLane,LOFF=LOFF,kh=vKh16))
    H,M_,Lo=0x0706,0x0302,0x0504
    for j in range(3):
        tab={1:H,2+j:H,5+(j+1)%3:M_,5+(j+2)%3:Lo}
        a('v_mov_b32 v16, 0')
        for ph,val in tab.items():
            a('v_cmp_eq_u32 vcc, %d, v13\nv_mov_b32 v17, 0x%x\ns_nop 0\nv_cndmask_b32 v16, v16, v17, vcc',ph,val^0x0c0c)
        a('v_lshlrev_b32 v16, v14, v16\nv_xor_b32 v%d, 0x0c0c0c0c, v16',SEL+j)
    a('''v_cmp_eq_u32 vcc, 0, v13
v_mov_b32 v17, 0x3f80
v_lshlrev_b32 v17, v14, v17
v_cndmask_b32 v{C}, 0, v17, vcc
v_subrev_u32 v16, 2, v13
v_cmp_le_u32 vcc, 3, v16
v_mov_b32 v17, 1
v_mov_b32 v16, 0x3f803f80
v_cndmask_b32 v{m}, 0, v17, vcc
v_lshlrev_b32 v18, 2, v0
v_add_u32 v18, {LC}, v18
v_cmp_gt_u32 vcc, 128, v0
s_mov_b64 exec, vcc
s_cbranch_execz B_noc
ds_write_b32 v18, v16
B_noc:
s_mov_b64 exec, -1
v_bfe_u32 v16, v{L}, 3, 2
v_and_b32 v17, 3, v{L}
v_lshl_add_u32 v16, v16, 2, v17
v_xor_b32 v16, 8, v16
v_lshl_add_u32 v16, v16, 1, v12
v_lshlrev_b32 v{pat}, 4, v16
s_lshl_b32 s3, s{w}, 2
s_add_u32 s3, s3, {FL}
v_lshl_add_u32 v{fl}, v{L}, 20, s3
v_add_u32 v8, {LW}, v3
s_waitcnt vmcnt({npf})
ds_write_b128 v8, v[100:103]
ds_write_b128 v8, v[104:107] offset:8192
s_cmp_ge_u32 s{w}, 4
s_cbranch_scc1 B_round
ds_write_b128 v8, v[108:111] offset:16384'''.format(C=COEF,m=vDAm,LC=L_CONST,LW=L_W,w=sWave,L=vLane,pat=vPat,FL=L_FLAG,fl=vFlag,npf=npf))
    a('B_round:')
    stamp(a,opt,1)
    a('''v_and_b32 v44, 1, v{t}
v_add_u32 v44, s{i0}, v44
v_lshrrev_b32 v45, 16, v{tab}
s_add_u32 s3, s{i0}, s{wd}
v_min_u32 v46, s3, v45
v_and_b32 v47, 0xffff, v{tab}
v_lshrrev_b32 v48, 1, v{t}
v_mul_u32_u24 v48, 640, v48
v_add3_u32 v47, v47, v48, v44
v_mul_u32_u24 v47, {RS}, v47'''.format(RS=RS,t=vTid,i0=sI0,tab=vTab,wd=sWd))
    for j in range(J):
        a('v_cmp_lt_u32 %s, v44, v46\nv_add_u32 v44, 2, v44',sr(sEX+2*j,2))
    for j in range(J):
        a('s_mov_b64 exec, %s\ns_cbranch_execz B_ld_done\nbuffer_load_dwordx4 %s, v47, %s, s%d offen offset:%d',sr(sEX+2*j,2),vr(4*j,4),sr(sWS,4),sREC,2*RS*j)
    a('B_ld_done:\ns_mov_b64 exec, -1')
    a('''v_lshlrev_b32 v49, 4, v{t}
v_add_u32 v50, {DA}, v49
v_mov_b32 v52, 0
v_mov_b32 v53, 0
v_mov_b32 v54, 0
v_mov_b32 v55, 0x7fff0000
v_mov_b32 v56, 0
v_mov_b32 v57, 0
v_mov_b32 v58, 0
v_mov_b32 v59, 0
v_cmp_gt_u32 vcc, {n3}, v{t}
ds_write_b128 v50, v[52:55]
ds_write_b128 v50, v[56:59] offset:{dYA}
s_mov_b64 exec, vcc
ds_write_b128 v50, v[52:55] offset:8192
ds_write_b128 v50, v[56:59] offset:{dYA2}
s_mov_b64 exec, -1
v_lshlrev_b32 v58, 2, v{L}
v_add_u32 v58, {CNT}, v58
s_cmp_lg_u32 s{w}, 0
s_cbranch_scc1 B_i1
v_sub_u32 v59, 63, v{L}
ds_write_b32 v58, v59
ds_write_b32 v58, v52 offset:256
v_cmp_eq_u32 vcc, 12, v{L}
v_mov_b32 v59, -1
v_mov_b32 v60, 0x1000
v_cndmask_b32 v59, v59, v60, vcc
v_cmp_gt_u32 vcc, 4, v{L}
s_mov_b64 exec, 0xffff
s_nop 0
v_cndmask_b32 v59, v59, v52, vcc
ds_write_b32 v58, v59 offset:1024
s_mov_b64 exec, -1
B_i1:
s_waitcnt lgkmcnt(0)
s_barrier
v_mov_b32 v59, {MAX}
ds_max_u32 v59, v45
v_mov_b32 v60, 64
s_waitcnt vmcnt(0)'''.format(t=vTid,DA=L_DA,n3=STEPCAP*2-512,dYA=L_YA-L_DA,dYA2=L_YA-L_DA+8192,L=vLane,CNT=L_CNT,w=sWave,MAX=L_MAX))
    stamp(a,opt,2)
    if opt.get('pf',0)&2: pf(opt['pf']&1,120)
    if opt.get('pf',0)&4: pf2(122)
    a('s_mov_b32 s3, %d',L_CNT)
    for j in range(J):
        a('s_mov_b64 exec, %s\ns_cbranch_execz B_c_done\nv_bfe_u32 v%d, v%d, 16, 6\nv_lshl_add_u32 v%d, v%d, 2, s3\nds_add_rtn_u32 v%d, v%d, v60',
          sr(sEX+2*j,2),36+j,4*j+3,36+j,36+j,28+j,36+j)
        m=4*j; c=88+4*j
        a('v_and_b32 v%d, 0xffff0000, v%d\nv_and_b32 v%d, 0xffff0000, v%d\nv_and_b32 v%d, 0xffff0000, v%d\nv_and_b32 v%d, 0xffff, v%d\nv_min_u32 v%d, 9999, v%d\nv_lshlrev_b32 v%d, 10, v%d',
          c,m,c+1,m+1,c+2,m+2,c+3,m+3,c+3,c+3,c+3,c+3)
        if de: a('v_lshrrev_b32 v%d, 22, v%d\nv_add_lshl_u32 v%d, v%d, v48, 5',m+3,m+3,m+3,m+3)
        else: a('v_add_u32 v%d, %d, v47',m+3,96*j+16)
    a('''B_c_done:
s_mov_b64 exec, -1
s_waitcnt lgkmcnt(0)
s_barrier''')
    stamp(a,opt,5,1)
    a('''ds_read_b32 v61, v58
ds_read_b32 v62, v59
s_mul_i32 s3, s{w}, 5
v_mov_b32 v63, 0
s_waitcnt lgkmcnt(0)
v_readfirstlane_b32 s{mx}, v62'''.format(w=sWave,mx=sMax))
    for i in range(5):
        a('v_readlane_b32 s%d, v61, s3\ns_add_u32 s3, s3, 1\ns_nop 0\nv_cmp_gt_u32 vcc, s%d, v61\ns_nop 1\nv_addc_co_u32 v63, vcc, 0, v63, vcc',sT,sT)
    a('''ds_add_u32 v58, v63 offset:256
s_waitcnt lgkmcnt(0)
s_barrier''')
    stamp(a,opt,6,1)
    a('''v_cmp_gt_u32 vcc, 40, v{L}
ds_read_b32 v63, v58 offset:256
s_waitcnt lgkmcnt(0)
v_cndmask_b32 v63, v{L}, v63, vcc
v_lshlrev_b32 v63, 2, v63
ds_permute_b32 v64, v63, v61
v_and_b32 v65, 1, v{L}
v_cmp_eq_u32 vcc, 0, v65
s_waitcnt lgkmcnt(0)
v_lshrrev_b32 v66, 6, v64
v_and_b32 v64, 63, v64
v_sub_u32 v64, 63, v64
v_mov_b32_dpp v67, v66 quad_perm:[0,0,2,2] row_mask:0xf bank_mask:0xf
v_cndmask_b32 v68, 0, v66, vcc'''.format(L=vLane))
    scan(a,68)
    a('''v_sub_u32 v69, v68, v67
v_readlane_b32 s3, v68, 63
v_lshl_add_u32 v69, v69, 1, v65
v_lshlrev_b32 v70, 2, v64
v_add_u32 v70, {NB}, v70
ds_write_b32 v70, v69
v_cmp_eq_u32 vcc, 0, v67
v_mul_u32_u24 v64, {PROW}, v64
v_mov_b32 v70, 0x100000
s_add_u32 s3, s3, 7
s_lshr_b32 s3, s3, 3
v_cndmask_b32 v64, v64, v70, vcc
v_cndmask_b32 v{pend}, v68, v70, vcc
ds_write_b32 v58, v64 offset:768
s_max_u32 s{Ls}, s3, 16
s_cmp_le_u32 s{Ls}, {cap}
s_cbranch_scc1 B_fit
s_cmp_gt_u32 s{wd}, 2
s_cselect_b32 s{wd}, 2, 1
s_waitcnt lgkmcnt(0)
s_barrier
s_branch B_round
B_fit:
v_cvt_f32_u32 v71, s{Ls}
v_rcp_f32 v71, v71
s_mov_b32 s{T}, {DA}
v_mul_f32 v72, 0.5, v71'''.format(NB=L_NB,PROW=PROW,pend=vPend,Ls=sL,cap=STEPCAP//8,wd=sWd,T=sT,DA=L_DA))
    stamp(a,opt,7,1)
    for j in range(J):
        a('s_mov_b64 exec, %s\ns_cbranch_execz B_n_done\nds_read_b32 v%d, v%d offset:%d',sr(sEX+2*j,2),36+j,36+j,L_NB-L_CNT)
    a("""B_n_done:
s_mov_b64 exec, -1
s_mul_i32 s{c0}, s{w}, s{L}
s_add_u32 s{en}, s{c0}, s{L}
s_mov_b32 s{cur}, s{c0}
s_cmp_eq_u32 s{i0}, 0
s_cselect_b32 s{thr}, s{en}, 0
s_and_b32 s3, s{L}, 15
s_sub_u32 s{u0}, 16, s3
s_lshr_b32 s{it}, s{L}, 4
s_lshl_b32 s{L32}, s{L}, 5
s_sub_u32 s{bk}, 512, s{L32}
s_mov_b32 s{ph}, 0
s_movk_i32 s{inc}, 512
s_mov_b32 s{wi}, 0
s_mov_b32 s{xa}, 0
v_cmp_ge_u32 vcc, s{c0}, v{pend}
v_lshrrev_b32 v80, 2, v{kh}
v_mov_b32 v{lp}, v{LOFF}
v_mov_b32 v{xo}, v{LOFF}
v_lshlrev_b32 v{wad}, 4, v{lane}
s_bcnt1_i32_b64 s{p2}, vcc
s_mov_b32 s{p20}, s{p2}
v_add_u32 v{wad}, {LW}, v{wad}
s_lshl_b32 s3, s{p2}, 2
s_add_u32 s3, s3, {ROW}
v_add_u32 v{rp}, s3, v80
v_mov_b32 v80, s{L32}
s_waitcnt lgkmcnt(0)""".format(**K))
    for j in range(J):
        a("""s_mov_b64 exec, {ex}
s_cbranch_execz B_s_done
v_lshrrev_b32 v73, 6, v{pos}
v_lshl_add_u32 v73, v73, 1, v{nb}
v_lshrrev_b32 v75, 1, v73
v_cvt_f32_u32 v74, v75
v_fma_f32 v74, v74, v71, v72
v_cvt_u32_f32 v74, v74
v_mad_u32_u24 v74, v74, s{L}, 9
v_cmp_lt_u32 vcc, v75, v74
v_lshl_add_u32 v73, v73, 4, s{T}
ds_write_b128 v73, {mv}
v_cndmask_b32 v74, 0, v80, vcc
ds_write_b96 v73, {cv} offset:{ya}
v_add_u32 v74, v74, v73
ds_write_b32 v74, v{c3} offset:{yw}""".format(ex=sr(sEX+2*j,2),pos=28+j,nb=36+j,mv=vr(4*j,4),cv=vr(88+4*j,3),c3=88+4*j+3,ya=L_YA-L_DA,yw=L_YA-L_DA+12-288,L=sL,T=sT))
    a("""B_s_done:
s_mov_b64 exec, -1
s_lshl_b32 s3, s{c0}, 5
s_add_u32 s3, s3, {DA}
v_add_u32 v82, s3, v{kh}
s_lshl_b32 s{T}, s{u0}, 5
s_sub_u32 s3, s3, s{T}
s_add_u32 s3, s3, 12
v_add_u32 v83, s3, v{pat}
v_add_u32 v{rec}, 512, v83
v_mov_b32 v85, {LC}
v_cmp_eq_u32 vcc, 1, v{dam}
s_cmp_gt_u32 s{u0}, 15
s_cselect_b32 s3, 512, 0
v_cndmask_b32 v85, v85, v82, vcc
s_sub_u32 s3, s3, s{T}
s_add_u32 s3, s3, {dYA}
v_add_u32 v{ya}, s3, v82
s_cmp_gt_u32 s{u0}, 14
s_cselect_b32 s3, 512, 0
s_sub_u32 s3, s3, s{T}
v_mad_i32_i24 v{da}, v{dam}, s3, v85
v_add_u32 v81, s{L32}, v82
s_sub_u32 s3, 0x3e0, s{T}""".format(**K))
    stamp(a,opt,8,1)
    for r in range(8):
        a('s_and_b32 s3, s3, 0xe0\nv_add_u32 v%d, s3, v81\ns_add_u32 s3, s3, 32',F0+r)
    a('s_add_u32 s%d, s%d, 1\ns_and_b32 s%d, s%d, 7\ns_waitcnt lgkmcnt(0)\ns_barrier',sInc8,sU0,sInc8,sInc8)
    stamp(a,opt,3)
    e=Asm(); yw=L_YA-L_DA+12-288
    if not opt.get('noprio'): e('s_setprio 3')
    e('ds_read_b32 v%d, v81 offset:%d',F0+8,yw)
    e('ds_read_b32 v86, v83\nds_read_b32 v%d, v%d',vRecA,vREC)
    for r in range(8): e('ds_read_b32 v%d, v%d offset:%d',F0+r,F0+r,yw+32)
    e('ds_read_b128 %s, v85\nds_read_b128 %s, v82 offset:%d\ns_waitcnt lgkmcnt(10)',vr(ACC+8,4),vr(Y0,4),L_YA-L_DA)
    e('v_add_u32 v%d, v%d, v%d\nv_add_u32 v86, v%d, v86\nv_add_u32 v%d, v%d, v%d',F0+8,F0+8,LOFF,vKh16,vRecA,vKh16,vRecA)
    e(eald(EA,86)); e(eald(ACC,vRecA))
    for l in xloads(ACC+4,F0+8): e(l)
    e('s_waitcnt lgkmcnt(0)')
    e('s_setprio 0')
    for r in range(8): e('v_add_u32 v%d, v%d, v%d',F0+r,F0+r,LOFF)
    for r in range(1,8): e('s_cmp_eq_u32 s%d, %d\ns_cbranch_scc1 B_x%d',sInc8,r,r)
    for r in range(8):
        e('B_x%d:',r)
        for l in xloads(X0+4*r,F0+r): e(l)
    for r in range(7):
        e('s_cmp_le_u32 s%d, %d\ns_cbranch_scc1 B_xd',sInc8,r)
        for l in xloads(X0+4*r,F0+r): e(l)
    e('B_xd:\nglobal_load_dword v%d, v%d, s[4:5]',vJunk,LOFF)
    e('ds_read_b128 %s, v85 offset:32',vr(D,4))
    for l in perms(ACC+8): e(l)
    for i in range(4): e('v_mov_b32 v%d, v%d',Y0+4+i,Y0+i)
    for l in nextseg(): e(l)
    def cpy(m): return 's_mov_b64 exec, %s\n'%sr(m,2)+''.join('v_mov_b32 v%d, v%d\n'%(EA+i,ACC+i) for i in range(4))+'s_mov_b64 exec, -1'
    mF=['v_mfma_f32_32x32x16_bf16 %s, %s, %s, 0'%(vr(F0+16*b,16),vr(COEF,4),vr(ACC+4,4)) for b in range(2)]
    e('s_cmp_gt_u32 s%d, 8\ns_cbranch_scc1 B_entB',sU0)
    eA=Asm()
    for p in range(5): eA(wread(p,1,24*p+4)); eA(wread(p,0,park(p,0)))
    eA('s_waitcnt vmcnt(37) lgkmcnt(0)')
    for p in range(5): eA(mfR(p,1,24*p+4))
    for p in range(5): eA(mfR(p,0,park(p,0)))
    eA('s_waitcnt vmcnt(33)'); eA(mF[0]); eA(mF[1]); eA(cpy(sMhi)); eA('s_nop 7\ns_cmp_le_u32 s%d, 4\ns_cbranch_scc1 B_go',sU0)
    for p in range(5): eA(wread(p,1,park(p,8)))
    eA('s_branch B_go')
    eB=Asm()
    pk=lambda p: W4 if p==4 else 24*(p+1)+20
    for p in range(5): eB(wread(p,0,24*p+16)); eB(wread(p,1,pk(p)))
    eB('s_waitcnt vmcnt(37) lgkmcnt(0)'); eB(cpy(sMhi)); eB('s_nop 1')
    for p in range(5): eB(mfR(p,0,24*p+16))
    for p in range(5): eB(mfR(p,1,pk(p)))
    eB('s_waitcnt vmcnt(33)'); eB(mF[0]); eB(mF[1]); eB(cpy(sMlo)); eB('s_nop 7\ns_cmp_le_u32 s%d, 12\ns_cbranch_scc1 B_go',sU0)
    for p in range(5): eB(wread(p,0,park(p,0)))
    for x in (eA,eB): check_seq(e.lines+x.lines+step(0,True),'entry')
    a.lines+=e.lines+eA.lines; a('B_entB:'); a.lines+=eB.lines
    a('B_go:\ns_waitcnt lgkmcnt(0)')
    if not opt.get('noprio'): a('s_cmp_lt_u32 s%d, 4\ns_cbranch_scc1 B_go2\ns_setprio 1\nB_go2:',sWave)
    stamp(a,opt,4)
    for u in range(1,16): a('s_cmp_eq_u32 s%d, %d\ns_cbranch_scc1 B_M%d',sU0,u,u)
    a('s_branch B_M0')
    a('.p2align 6')
    for u in range(16):
        a('B_N%d:',u); a('\n'.join(step(u,False))); a('s_cbranch_scc1 B_FL%d',u)
        check_seq(step((u-1)&15,False)+step(u,False)+step((u+1)&15,False),'N%d'%u)
    a('s_branch B_N0')
    for u in range(16):
        a('B_M%d:',u); a('\n'.join(step(u,True))); a('s_cbranch_scc0 B_N%d',(u+1)&15)
        a('B_FL%d:',u); a('\n'.join(flush(u)))
        if u<15: a('s_cbranch_scc1 B_exit'); a('\n'.join(nextseg()))
    a('s_cbranch_scc0 B_seg0\ns_cmp_eq_u32 s%d, 1\ns_cbranch_scc1 B_exit',sPhase)
    if opt.get('dbg') and not opt.get('fine'): a('s_memrealtime s[80:81]')
    a('\n'.join(restart()))
    a('B_seg0:'); a('\n'.join(nextseg())); a('s_branch B_M0')
    check_seq(step(15,False)+flush(15)+restart()+nextseg()+step(0,True),'restart')
    for b in range(2): a('\n'.join(addold(b)))
    a('B_exit:')
    stamp(a,opt,6)
    a('''s_add_u32 s{i0}, s{i0}, s{wd}
s_cmp_ge_u32 s{i0}, s{mx}
s_cbranch_scc1 B_gemm
s_waitcnt vmcnt(0) lgkmcnt(0)
s_nop 7
s_barrier
s_branch B_round'''.format(i0=sI0,wd=sWd,mx=sMax))
    gemm(a,opt)
    a('B_end:\ns_endpgm')

def gemm(a,opt):
    G=Asm(); OA=80; RB=124; NR=7
    G('''B_gemm:
s_waitcnt lgkmcnt(0)
s_mul_i32 s3, s{w}, 20480
s_add_u32 s3, s3, {WF}
v_lshlrev_b32 v{t}, 4, v{L}
s_nop 7'''.format(w=sWave,WF=WF,t=vTmp,L=vLane))
    for s in range(20):
        G('buffer_load_dwordx4 %s, v%d, %s, s3 offen offset:%d',vr(4*s,4),vTmp,sr(sWS,4),(s&3)*1024)
        if s&3==3: G('s_add_u32 s3, s3, 4096')
    Pa,Pb0,Pb1,Oa,Ob0,Ob1=ACC,ACC+1,ACC+2,ACC+3,ACC+4,ACC+5
    G('''v_and_b32 v{x}, 15, v{L}
v_lshrrev_b32 v{y}, 4, v{L}
v_mul_u32_u24 v{Pa}, {PROW}, v{x}
v_lshl_add_u32 v{Pa}, v{y}, 4, v{Pa}
s_lshl_b32 s3, s{n0}, 10
s_lshl_b32 s{T}, s{w}, 5
s_add_u32 s3, s3, s{T}
v_lshl_add_u32 v{z}, v{y}, 3, s3
v_lshl_add_u32 v{Oa}, v{x}, 10, v{z}
v_and_b32 v{x}, 7, v{L}
v_add_u32 v{x}, 32, v{x}
v_mul_u32_u24 v{Pb0}, {PROW}, v{x}
v_lshl_add_u32 v{Pb0}, v{y}, 4, v{Pb0}
v_lshl_add_u32 v{Ob0}, v{x}, 10, v{z}
v_cmp_gt_u32 vcc, s{nn}, v{x}
v_mov_b32 v{z}, 0x7fff0000
v_bfe_u32 v{y}, v{L}, 3, 1
v_cndmask_b32 v{Ob0}, v{z}, v{Ob0}, vcc
v_mul_u32_u24 v{x}, 768, v{y}
v_add_u32 v{Pb1}, v{Pb0}, v{x}
v_lshl_add_u32 v{Ob1}, v{y}, 8, v{Ob0}
v_lshl_or_b32 v{Ob0}, v{y}, 30, v{Ob0}
s_barrier'''.format(x=ACC+6,y=ACC+7,z=ACC+8,L=vLane,Pa=Pa,Pb0=Pb0,Pb1=Pb1,Oa=Oa,Ob0=Ob0,Ob1=Ob1,PROW=PROW,n0=sN0,T=sT,w=sWave,nn=sNN))
    stamp(G,opt,7)
    t0=[(0,Pa,0),(1,Pa,16*PROW),(2,Pb0,0)]
    t1=[(3+3*t+j,Pa,16*PROW*t+512+768*j) for t in range(2) for j in range(3)]+[(9,Pb1,512),(10,Pb0,512+1536)]
    ops=[(s,ac,ad,off+64*s) for s in range(8) for ac,ad,off in t0]+[(8+s,ac,ad,off+64*s) for s in range(12) for ac,ad,off in t1]
    rd=lambda i:'ds_read_b128 %s, v%d offset:%d'%(vr(RB+4*(i%NR),4),ops[i][2],ops[i][3])
    for i in range(NR-1): G(rd(i))
    last=-1; sig=[]
    for c in range(12):
        r=OA+c; g=X0+c
        sig+=['v_mul_f32 v%d, 0xbfb8aa3b, v%d'%(g,r),'v_exp_f32 v%d, v%d'%(g,g),'v_add_f32 v%d, 1.0, v%d'%(g,g),'v_rcp_f32 v%d, v%d'%(g,g)]
    sig=[sig[4*c+k] for k in range(4) for c in range(12)]
    st=lambda d,ad,off,so='0':'buffer_store_dwordx2 %s, v%d, %s, %s offen offset:%d'%(vr(d,2),ad,sr(sOUT,4),so,off)
    for t in range(3):
        d=X0+12+2*t
        sig+=['v_cvt_pk_bf16_f32 v%d, v%d, v%d'%(d,OA+4*t,OA+4*t+1),'v_cvt_pk_bf16_f32 v%d, v%d, v%d'%(d+1,OA+4*t+2,OA+4*t+3)]
    G('s_movk_i32 s3, 0x4000')
    for i,(s,ac,ad,off) in enumerate(ops):
        if i+NR-1<len(ops): G(rd(i+NR-1))
        w='lgkmcnt(%d)'%min(NR-1,len(ops)-1-i)
        if s!=last: w='vmcnt(%d) '%(19-s)+w; last=s
        G('s_waitcnt '+w)
        acc=vr(OA+4*ac,4)
        G('v_mfma_f32_16x16x32_bf16 %s, %s, %s, %s',acc,vr(4*s,4),vr(RB+4*(i%NR),4),'0' if s in(0,8) else acc)
        if i>=28 and sig: G(sig.pop(0))
    for t in range(3): G(st(X0+12+2*t,Oa if t<2 else Ob0,0,'s3' if t==1 else '0'))
    stamp(G,opt,8)
    for n,(ac,ad,off) in enumerate(t1):
        gt=X0+4*(n//3); r=OA+4*ac
        for k in range(4): G('v_mul_f32 v%d, v%d, v%d',r+k,r+k,gt+k)
        G('v_cvt_pk_bf16_f32 v%d, v%d, v%d\nv_cvt_pk_bf16_f32 v%d, v%d, v%d',r,r,r+1,r+1,r+2,r+3)
        if n<6: G(st(r,Oa,256*(1+n%3),'s3' if n>=3 else '0'))
        else: G(st(r,Ob1 if n==6 else Ob0,256 if n==6 else 768))
    check_seq(G.lines,'gemm')
    a.lines+=G.lines
    if opt.get('dbg'):
        a('s_waitcnt vmcnt(0)'); stamp(a,opt,9)
        a('s_lshl_b32 s3, s2, 3\ns_add_u32 s3, s3, s%d\ns_lshl_b32 s3, s3, 6\ns_add_u32 s3, s3, %d\nv_mov_b32 v20, 0',sWave,STAMP+0x10000)
        for i in range(10): a('v_mov_b32 v%d, s%d',i,70+2*i)
        a('v_mov_b32 v10, s%d\ns_sub_u32 s4, s94, s92\nv_mov_b32 v11, s4\n; clk %d %d',sL,opt.get('c0',4),opt.get('c1',6))
        for i in range(3): a('buffer_store_dwordx4 %s, v20, %s, s3 offen offset:%d',vr(4*i,4),sr(sWS,4),16*i)
```

```python
import sys
from asmlib import *
from kA import *
from kB import *
NAME='gather_scatter__tensor_product_equiv_equiformer__graph'
def desc(n,v,s=102):
    return '''.p2align 6
.amdhsa_kernel %s
  .amdhsa_next_free_vgpr %d
  .amdhsa_next_free_sgpr %d
  .amdhsa_accum_offset %d
  .amdhsa_group_segment_fixed_size 0
  .amdhsa_kernarg_size 96
  .amdhsa_user_sgpr_count 2
  .amdhsa_user_sgpr_kernarg_segment_ptr 1
  .amdhsa_system_sgpr_workgroup_id_x 1
.end_amdhsa_kernel
'''%(n,v,s,v)
def build(opt):
    hdr=''.join(l for l in open('cdna_kernels/%s.s.ref'%NAME) if l.startswith(';') and '@launch' not in l and 'Override' not in l and 'grid=ceil' not in l)
    a=Asm()
    a('.amdgcn_target "amdgcn-amd-amdhsa--gfx950"\n.text')
    genA(a,opt); genB(a,opt,NAME+'_kernel')
    la='; @launch kernel=sort_kernel grid=(250,1,1) block=(640,1,1) lds=35840\n'
    lb='; @launch kernel=%s_kernel grid=(256,1,1) block=(512,1,1) lds=%d\n'%(NAME,L_END)
    le='; @launch kernel=nop_kernel grid=(256,1,1) block=(64,1,1) lds=0\n'
    ex=''
    if opt.get('nop'):
        a('.globl nop_kernel\n.p2align 8\n.type nop_kernel,@function\nnop_kernel:')
        if 'rd' in opt:
            a('''s_cmp_lg_u32 s2, 0
s_cbranch_scc1 N_end
s_load_dwordx2 s[4:5], s[0:1], 88
s_waitcnt lgkmcnt(0)
s_add_u32 s4, s4, %d
s_addc_u32 s5, s5, 0
s_load_dword s6, s[4:5], 0
s_load_dword s7, s[4:5], %d
s_waitcnt lgkmcnt(0)
s_sub_u32 s7, s7, s6
s_add_u32 s7, s7, 10000
s_min_u32 s7, s7, 30000
N_spin:
s_memrealtime s[8:9]
s_waitcnt lgkmcnt(0)
s_sub_u32 s8, s8, s6
s_cmp_lt_u32 s8, s7
s_cbranch_scc1 N_spin
N_end:''',STAMP,0 if opt['rd']<0 else 0x10000+4*opt['rd'])
        a('s_endpgm'); ex=desc('nop_kernel',8)
    return (hdr+(le if opt.get('nop')==2 else '')+la*opt.get('na',1)+lb*opt.get('nb',1)+(le if opt.get('nop')==1 else '')
      +a.text()+'.section .rodata,"a"\n'+ex+desc('sort_kernel',56)+desc(NAME+'_kernel',256))
if __name__=='__main__':
    out=sys.argv[1]; opt={}
    for x in sys.argv[2:]:
        k,_,v=x.partition('='); opt[k]=int(v) if v else 1
    t=build(opt)
    if opt.get('strip'):
        L=t.split('\n'); i=L.index('B_N0:'); j=L.index('B_exit:')
        def bad(l):
            l=l.strip(); m=opt['strip']
            return ((m&1 and l.startswith('global_load_dword ')) or (m&2 and l.startswith('ds_read_b128 v[212')) or (m&4 and l.startswith('v_mfma') and 'v[208:211]' in l)
               or (m&8 and l.startswith(('v_fmac','v_mul_f32'))) or (m&16 and l.startswith('v_mfma') and 'v[224:227]' in l) or (m&32 and l.startswith('v_perm')) or (m&64 and l.startswith('buffer_load_dwordx4')))
        t='\n'.join(L[:i]+[l for l in L[i:j] if not bad(l)]+L[j:])
    if opt.get('depth'): t=t.replace('vmcnt(29) l','vmcnt(%d) l'%(4*opt['depth']-4)).replace('vmcnt(28) l','vmcnt(%d) l'%(4*opt['depth']-4))
    if opt.get('xf'):
        import re
        t=re.sub(r'(global_load_dword v\d+, v\d+, s\[4:5\] offset:\d+)',r'\1 '+{1:'sc1',2:'nt',3:'sc0 sc1',4:'sc0'}[opt['xf']],t)
    if opt.get('noea'): t=t.replace('buffer_load_dwordx4 v[16:19], v4, s[16:19], 0 offen\n','buffer_load_dword v16, v2, s[8:11], 0 offen\n').replace('buffer_load_dwordx4 v[20:23], v4, s[16:19], 0 offen offset:16','buffer_load_dword v20, v2, s[8:11], 0 offen').replace('buffer_store_dwordx4 v[16:19], v14, s[20:23], s58 offen','').replace('buffer_store_dwordx4 v[20:23], v14, s[20:23], s59 offen','').replace('s_cmp_ge_u32 s2, 256','s_cmp_ge_u32 s2, 0')
    if opt.get('af'):
        import re
        t=re.sub(r'(buffer_store_dwordx4 v\[\d+:\d+\], v\d+, s\[20:23\], s\d+ offen)',r'\1 '+{1:'sc1',2:'nt',3:'sc0 sc1'}[opt['af']],t)
    if opt.get('eant'): t=t.replace('s61 offen\n','s61 offen nt\n')
    open(out,'w').write(t)
```

```python
from asmlib import *
from kA import *
PROW=2848
L_P=0; L_W=40*PROW; STEPCAP=432
L_DA=L_W+20480; L_YA=L_DA+STEPCAP*32; L_CONST=L_YA+STEPCAP*32
L_CNT=L_CONST+512; L_RANK=L_CNT+256; L_NB=L_RANK+256; L_ROW=L_NB+256; L_MAX=L_ROW+256; L_FLAG=L_MAX+16; L_END=L_FLAG+48
assert L_END<=163840 and L_CONST%16==0
J=7; DEP=4; SH=DEP+1
F0=120; X0=152; ACC=184; IDX=206; LOFF=207; COEF=208; D=212; Y0=216; EA=224; W4=228; SEL=232
vDA=235; vYA=236; vXo=237; vREC=238; vDAm=239; vWad=240; vRecA=241; T0=242; T1=243
vRowP=244; vRow=245; vPend=246; vLaneP=247; vKh16=248; vTid=249; vTab=250; vLane=251; vTmp=252; vFlag=253; vJunk=254; vPat=255
sX=8; sWS=12; sOUT=16; sEX=20
sWave=34; sI0=35; sWd=36; sMax=37; sL=38; sU0=39; sC0=40; sCur=41; sEnd=42; sCnt=43; sP2=44; sP20=45
sPhase=46; sIter=47; sInc=48; sInc8=49; sWinc=50; sXoff=51; sXadd=52; sBack=53; sMhi=54; sMlo=56
sTile=58; sN0=59; sNN=60; sREC=61; sT=62; sThr=63; sRet=66; sFl=68; sPe=69
def Rr(p,pi,u):
    return 24*p+(((u+8)&15) if pi==0 else (16+u if u<8 else u))
def park(p,u):
    return W4 if p==4 else 24*(p+1)+(0 if u==0 else 8)
def mfR(p,pi,w): d=24*p+8*pi; return 'v_mfma_f32_32x32x16_bf16 %s, %s, %s, 0'%(vr(d,16),vr(EA,4),vr(w,4))
def wread(p,pi,dst): return 'ds_read_b128 %s, v%d offset:%d'%(vr(dst,4),vWad,(pi*5+p)*1024)
def perms(d=D):
    return ['v_perm_b32 v%d, v%d, v%d, v%d'%(COEF+1+j,d+j,d+(j+2)%3,SEL+j) for j in range(3)]
def fmas(u,pi,first):
    fb=F0+16*(u&1)+8*pi; y=Y0+4*(u&1); t=T0+pi
    def op(k,a,b): return ('v_mul_f32' if first else 'v_fmac_f32')+' v%d, v%d, v%d'%(ACC+2*k+pi,a,b)
    o=[op(0,fb,Rr(0,pi,u)),op(1,fb+1,Rr(1,pi,u)),'v_mul_f32 v%d, v%d, v%d'%(t,fb,Rr(2,pi,u))]
    o+=[op(3+3*j,fb+2+j,Rr(3,pi,u)) for j in range(3)]
    o+=[op(2+3*j,t,y+j) for j in range(3)]
    o+=[op(4+3*j,fb+5+j,Rr(4,pi,u)) for j in range(3)]
    return o
def xloads(dst,idx=IDX):
    return ['global_load_dword v%d, v%d, s[4:5] offset:%d'%(dst+j,idx,256*j) for j in range(4)]
def step(u,first):
    o=[]; burst=u in(0,8); pa=1 if u==0 else 0
    f=fmas(u,pa,first)+fmas(u,1-pa,first)
    xr=X0+4*((u+1)&(DEP-1))
    mF='v_mfma_f32_32x32x16_bf16 %s, %s, %s, 0'%(vr(F0+16*((u+1)&1),16),vr(COEF,4),vr(xr,4))
    pre=perms()
    if u==16-SH: pre.append('v_add_u32 v%d, s%d, v%d'%(vXo,sXadd,vXo))
    pre.append('v_add_u32 v%d, v%d, v%d'%(IDX,Y0+4*(u&1)+3,vXo))
    if u==14: pre.append('v_mad_i32_i24 v%d, v%d, s%d, v%d'%(vDA,vDAm,sInc,vDA))
    if u==15: pre.append('v_add_u32 v%d, s%d, v%d'%(vYA,sInc,vYA))
    if u==12: pre.append('v_add_u32 v%d, s%d, v%d'%(vWad,sWinc,vWad))
    tail=['ds_read_b128 %s, v%d offset:%d'%(vr(D,4),vDA,((u+2)&15)*32),
          'ds_read_b128 %s, v%d offset:%d'%(vr(Y0+4*((u+1)&1),4),vYA,((u+1)&15)*32)]
    if (u&7) in (4,5,6):
        nb=8 if u<8 else 0
        for p in {4:(0,1),5:(2,3),6:(4,)}[u&7]: tail.append(wread(p,1 if nb==8 else 0,park(p,nb)))
    tail+=xloads(xr)
    if burst:
        tail+=['s_mov_b64 exec, %s'%sr(sMhi if u==0 else sMlo,2),eald(EA,vRecA),'s_mov_b64 exec, -1']
        o.append('s_waitcnt vmcnt(%d) lgkmcnt(0)'%(4*DEP-4))
        for p in range(5):
            o.append(mfR(p,1-pa,park(p,u)))
            if p==0 and u==0:
                o+=['s_sub_u32 s%d, s%d, 1'%(sIter,sIter),'s_cmp_eq_u32 s%d, 0'%sIter,'s_cselect_b32 s%d, s%d, 512'%(sInc,sBack),
                    's_cselect_b32 s%d, 10240, 0'%sWinc,'s_cselect_b32 s%d, 128, 0'%sXadd,
                    'v_add_u32 v%d, s%d, v%d'%(vREC,sInc,vREC),'ds_read_b32 v%d, v%d'%(vRecA,vREC)]
            if p==2: o+=pre
            else: o+=f[:3]; f=f[3:]
        if u==0: o+=['s_waitcnt lgkmcnt(0)','v_add_u32 v%d, v%d, v%d'%(vRecA,vKh16,vRecA)]
    else:
        o+=f[:4]+['s_waitcnt vmcnt(%d) lgkmcnt(0)'%(4*DEP-4+(1 if (u&7)<=DEP else 0))]+pre+f[4:5]; f=f[5:]
    o+=[mF]+tail+['s_sub_u32 s%d, s%d, 1'%(sCnt,sCnt)]+f
    return o
def nextseg():
    return ['v_readlane_b32 s%d, v%d, s%d'%(sPe,vPend,sP2),'ds_read_b32 v%d, v%d'%(vRow,vRowP),
            's_min_u32 s%d, s%d, s%d'%(sT,sPe,sEnd),'s_sub_u32 s%d, s%d, s%d'%(sCnt,sT,sCur),
            's_sub_u32 s%d, s%d, 1'%(sCnt,sCnt),'s_mov_b32 s%d, s%d'%(sCur,sT)]
def flush(u,lab=True):
    o=['v_add_u32 v%d, v%d, v%d'%(vTmp,vRow,vLaneP),'s_cmp_lt_u32 s%d, s%d'%(sCur,sThr),'s_cbranch_scc1 B_FP%d'%u,
       's_call_b64 %s, B_add%d'%(sr(sRet,2),u&1),'B_FP%d:'%u]
    for k in range(11):
        o.append('v_cvt_pk_bf16_f32 v%d, v%d, v%d'%(ACC+2*k,ACC+2*k,ACC+2*k+1))
        if k>1 and k%2==0: o.append('ds_write2st64_b32 v%d, v%d, v%d offset0:%d offset1:%d'%(vTmp,ACC+2*k-4,ACC+2*k-2,k-2,k-1))
    o+=['v_add_u32 v%d, 8, v%d'%(vRowP,vRowP),'s_add_u32 s%d, s%d, 2'%(sP2,sP2),
        'ds_write_b32 v%d, v%d offset:2560'%(vTmp,ACC+20),'ds_write_b32 v%d, v%d'%(vFlag,vLaneP),'s_cmp_eq_u32 s%d, s%d'%(sCur,sEnd)]
    return o
def addold(b):
    f=F0+16*b
    o=['B_add%d:'%b,'s_cmp_gt_u32 s%d, s%d'%(sPe,sThr),'s_cbranch_scc0 B_ret%d'%b,'s_lshl_b32 s%d, s%d, 7'%(sFl,sPhase),'s_cmp_eq_u32 s%d, s%d'%(sCur,sEnd),'s_cselect_b32 s%d, s%d, -1'%(sFl,sFl),
       'B_spin%d:'%b,'ds_read_b32 v%d, v%d offset:4'%(f+11,vFlag)]
    o+=['ds_read2st64_b32 %s, v%d offset0:%d offset1:%d'%(vr(f+k,2),vTmp,k,k+1) for k in range(0,10,2)]
    o+=['ds_read_b32 v%d, v%d offset:2560'%(f+10,vTmp),'s_waitcnt lgkmcnt(0)','v_readfirstlane_b32 s%d, v%d'%(sT,f+11),
        's_cmp_lt_i32 s%d, s%d'%(sT,sFl),'s_cbranch_scc1 B_spin%d'%b]
    for k in range(11):
        o+=['v_lshlrev_b32 v%d, 16, v%d'%(f+12+(k&1),f+k),'v_and_b32 v%d, 0xffff0000, v%d'%(f+k,f+k),
            'v_add_f32 v%d, v%d, v%d'%(ACC+2*k,ACC+2*k,f+12+(k&1)),'v_add_f32 v%d, v%d, v%d'%(ACC+2*k+1,ACC+2*k+1,f+k)]
    o+=['B_ret%d:'%b,'s_setpc_b64 %s'%sr(sRet,2)]
    return o
def restart():
    o=[wread(p,1,24*p+4) for p in range(5)]
    o+=['s_mov_b32 s%d, 1'%sPhase,'s_mov_b32 s%d, s%d'%(sCur,sC0),'s_sub_u32 s%d, s%d, s%d'%(sT,sP2,sP20),'s_lshl_b32 s%d, s%d, 2'%(sT,sT),
        's_mov_b32 s%d, s%d'%(sP2,sP20),'v_subrev_u32 v%d, s%d, v%d'%(vRowP,sT,vRowP),'v_add_u32 v%d, 128, v%d'%(vLaneP,vLaneP),
        's_lshl_b32 s%d, s%d, 5'%(sT,sEnd),'s_add_u32 s%d, s%d, %d'%(sT,sT,L_YA+12-32*SH),'v_lshl_add_u32 v%d, v%d, 4, s%d'%(T0,vLane,sT),'v_mov_b32 v%d, 0'%T1,
        's_mov_b64 exec, 0x%x'%((1<<(2*SH))-1),'ds_write_b32 v%d, v%d'%(T0,T1),'s_mov_b64 exec, -1',
        's_setprio 0','s_waitcnt vmcnt(%d) lgkmcnt(0)'%(28 if DEP==8 else 4*DEP)]
    o+=[mfR(p,1,24*p+4) for p in range(5)]
    return o
def stamp(a,opt,i,fine=0):
    if i in (5,6,7,8) and opt.get('fine',0)!=fine: return
    if opt.get('dbg'):
        if i==opt.get('c0',4): a('s_memtime s[92:93]')
        if i==opt.get('c1',6): a('s_memtime s[94:95]')
        a('s_memrealtime s[%d:%d]\ns_waitcnt lgkmcnt(0)',70+2*i,71+2*i)

OPT={}
def eald(d,ad): return 'buffer_load_dwordx4 %s, v%d, %s, %s offen'%((vr(d,4),ad)+((sr(sX,4),'0') if OPT.get('de') else (sr(sWS,4),'s%d'%sREC)))
K=dict(c0=sC0,w=sWave,L=sL,en=sEnd,cur=sCur,u0=sU0,it=sIter,bk=sBack,ph=sPhase,inc=sInc,wi=sWinc,xo=vXo,xa=sXadd,i0=sI0,thr=sThr,L32=sXoff,
        pend=vPend,kh=vKh16,lp=vLaneP,LOFF=LOFF,wad=vWad,lane=vLane,p2=sP2,p20=sP20,LW=L_W,ROW=L_ROW,rp=vRowP,DA=L_DA,T=sT,
        rec=vREC,LC=L_CONST,dam=vDAm,dYA=L_YA-L_DA,ya=vYA,da=vDA,pat=vPat)
def genB(a,opt,name):
    OPT.clear(); OPT.update(opt); de=opt.get('de'); RS=16 if de else 48
    a('''.globl %s
.p2align 8
.type %s,@function
%s:
s_cmp_ge_u32 s2, 256
s_cbranch_scc1 B_end''',name,name,name)
    stamp(a,opt,0)
    a('''s_load_dwordx2 s[4:5], s[0:1], 0
s_load_dwordx2 s[6:7], s[0:1], 72
s_load_dwordx2 s[64:65], s[0:1], 88
s_load_dwordx2 s[66:67], s[0:1], 16
s_and_b32 s3, s2, 7
s_lshl_b32 s3, s3, 5
s_lshr_b32 s%d, s2, 3
s_add_u32 s%d, s%d, s3''',sTile,sTile,sTile)
    a('''v_mov_b32 v%d, v0
v_and_b32 v%d, 63, v0
v_lshrrev_b32 v1, 6, v0
v_lshrrev_b32 v2, 1, v0
v_readfirstlane_b32 s%d, v1
v_lshlrev_b32 v2, 10, v2
s_lshl_b32 s3, s%d, 2
v_lshlrev_b32 v3, 4, v0
v_mov_b32 v%d, 0
v_cmp_gt_u32 vcc, 500, v0
s_mov_b32 s%d, %d
s_waitcnt lgkmcnt(0)''',vTid,vLane,sWave,sTile,vTab,sREC,REC)
    srd(a,sWS,64,WSSZ if not opt.get('dbg') else STAMP+0x100000)
    a('''s_mov_b64 exec, vcc
buffer_load_dword v%d, v2, %s, s3 offen
s_mov_b64 exec, -1
s_mov_b32 s3, %d
buffer_load_dwordx4 v[100:103], v3, %s, s3 offen
s_add_u32 s3, s3, 8192
buffer_load_dwordx4 v[104:107], v3, %s, s3 offen
s_add_u32 s3, s3, 8192
buffer_load_dwordx4 v[108:111], v3, %s, s3 offen''',vTab,sr(sWS,4),WR,sr(sWS,4),sr(sWS,4),sr(sWS,4))
    npf=0
    def pf(rnd,reg):
        a('''s_and_b32 s3, s2, 7
s_mul_i32 s3, s3, 1250
s_lshr_b32 s%d, s2, 3
s_lshl_b32 s%d, s%d, 7
s_add_u32 s3, s3, s%d
s_add_u32 s3, s3, %d
v_lshrrev_b32 v%d, 2, v%d
v_add_u32 v%d, s3, v%d
v_subrev_u32 v%d, 10000, v%d
v_min_u32 v%d, v%d, v%d
v_and_b32 v%d, 3, v%d
v_lshlrev_b32 v%d, 8, v%d
v_lshl_add_u32 v%d, v%d, 10, v%d
global_load_dword v%d, v%d, s[4:5]''',sT,sT,sT,sT,rnd*4096,reg,vTid,reg,reg,reg+1,reg,reg,reg,reg+1,reg+1,vTid,reg+1,reg+1,reg,reg,reg+1,vJunk,reg)
    def pf2(reg):
        a('''s_mul_i32 s3, s2, 160
v_add_u32 v%d, s3, v%d
v_min_u32 v%d, 39999, v%d
v_lshlrev_b32 v%d, 8, v%d
s_cmp_ge_u32 s%d, 3
s_cbranch_scc1 B_nopf2
global_load_dword v%d, v%d, s[4:5] offset:128
B_nopf2:''',reg,vTid,reg,reg,reg,reg,sWave,vJunk,reg)
    if opt.get('pf',0)&1: pf(0,112); npf=1
    srd(a,sOUT,6,10240000); srd(a,sX,66,5120000)
    a('''s_mul_i32 s3, s%d, 625
s_add_u32 s%d, s3, 15
s_lshr_b32 s%d, s%d, 4
s_add_u32 s3, s3, 640
s_lshr_b32 s3, s3, 4
s_sub_u32 s%d, s3, s%d
s_mov_b32 s%d, 0
s_mov_b32 s%d, %d
s_mov_b32 s%d, 0xffff0000
s_mov_b32 s%d, 0xffff0000
s_mov_b32 s%d, 0xffff
s_mov_b32 s%d, 0xffff''',sTile,sN0,sN0,sN0,sNN,sN0,sI0,sWd,2*J,sMhi,sMhi+1,sMlo,sMlo+1)
    a('''v_and_b32 v10, 31, v{L}
v_lshlrev_b32 v{LOFF}, 2, v10
v_lshrrev_b32 v11, 5, v{L}
v_lshlrev_b32 v{kh}, 4, v11
v_bfe_u32 v12, v{L}, 2, 1
v_bfe_u32 v13, v{L}, 3, 1
v_and_b32 v14, 3, v{L}
v_lshl_add_u32 v13, v13, 2, v14
v_bfe_u32 v14, v{L}, 4, 1
v_lshlrev_b32 v14, 4, v14
v_cmp_eq_u32 vcc, v11, v12
v_mov_b32 v15, 8
s_nop 0
v_cndmask_b32 v13, v15, v13, vcc'''.format(L=vLane,LOFF=LOFF,kh=vKh16))
    H,M_,Lo=0x0706,0x0302,0x0504
    for j in range(3):
        tab={1:H,2+j:H,5+(j+1)%3:M_,5+(j+2)%3:Lo}
        a('v_mov_b32 v16, 0')
        for ph,val in tab.items():
            a('v_cmp_eq_u32 vcc, %d, v13\nv_mov_b32 v17, 0x%x\ns_nop 0\nv_cndmask_b32 v16, v16, v17, vcc',ph,val^0x0c0c)
        a('v_lshlrev_b32 v16, v14, v16\nv_xor_b32 v%d, 0x0c0c0c0c, v16',SEL+j)
    a('''v_cmp_eq_u32 vcc, 0, v13
v_mov_b32 v17, 0x3f80
v_lshlrev_b32 v17, v14, v17
v_cndmask_b32 v{C}, 0, v17, vcc
v_subrev_u32 v16, 2, v13
v_cmp_le_u32 vcc, 3, v16
v_mov_b32 v17, 1
v_mov_b32 v16, 0x3f803f80
v_cndmask_b32 v{m}, 0, v17, vcc
v_lshlrev_b32 v18, 2, v0
v_add_u32 v18, {LC}, v18
v_cmp_gt_u32 vcc, 128, v0
s_mov_b64 exec, vcc
s_cbranch_execz B_noc
ds_write_b32 v18, v16
B_noc:
s_mov_b64 exec, -1
v_bfe_u32 v16, v{L}, 3, 2
v_and_b32 v17, 3, v{L}
v_lshl_add_u32 v16, v16, 2, v17
v_xor_b32 v16, 8, v16
v_lshl_add_u32 v16, v16, 1, v12
v_lshlrev_b32 v{pat}, 4, v16
s_lshl_b32 s3, s{w}, 2
s_add_u32 s3, s3, {FL}
v_lshl_add_u32 v{fl}, v{L}, 20, s3
v_add_u32 v8, {LW}, v3
s_waitcnt vmcnt({npf})
ds_write_b128 v8, v[100:103]
ds_write_b128 v8, v[104:107] offset:8192
s_cmp_ge_u32 s{w}, 4
s_cbranch_scc1 B_round
ds_write_b128 v8, v[108:111] offset:16384'''.format(C=COEF,m=vDAm,LC=L_CONST,LW=L_W,w=sWave,L=vLane,pat=vPat,FL=L_FLAG,fl=vFlag,npf=npf))
    a('B_round:')
    stamp(a,opt,1)
    a('''v_and_b32 v44, 1, v{t}
v_add_u32 v44, s{i0}, v44
v_lshrrev_b32 v45, 16, v{tab}
s_add_u32 s3, s{i0}, s{wd}
v_min_u32 v46, s3, v45
v_and_b32 v47, 0xffff, v{tab}
v_lshrrev_b32 v48, 1, v{t}
v_mul_u32_u24 v48, 640, v48
v_add3_u32 v47, v47, v48, v44
v_mul_u32_u24 v47, {RS}, v47'''.format(RS=RS,t=vTid,i0=sI0,tab=vTab,wd=sWd))
    for j in range(J):
        a('v_cmp_lt_u32 %s, v44, v46\nv_add_u32 v44, 2, v44',sr(sEX+2*j,2))
    for j in range(J):
        a('s_mov_b64 exec, %s\ns_cbranch_execz B_ld_done\nbuffer_load_dwordx4 %s, v47, %s, s%d offen offset:%d',sr(sEX+2*j,2),vr(4*j,4),sr(sWS,4),sREC,2*RS*j)
    a('B_ld_done:\ns_mov_b64 exec, -1')
    a('''v_lshlrev_b32 v49, 4, v{t}
v_add_u32 v50, {DA}, v49
v_mov_b32 v52, 0
v_mov_b32 v53, 0
v_mov_b32 v54, 0
v_mov_b32 v55, 0x7fff0000
v_mov_b32 v56, 0
v_mov_b32 v57, 0
v_mov_b32 v58, 0
v_mov_b32 v59, 0
v_cmp_gt_u32 vcc, {n3}, v{t}
ds_write_b128 v50, v[52:55]
ds_write_b128 v50, v[56:59] offset:{dYA}
s_mov_b64 exec, vcc
ds_write_b128 v50, v[52:55] offset:8192
ds_write_b128 v50, v[56:59] offset:{dYA2}
s_mov_b64 exec, -1
v_lshlrev_b32 v58, 2, v{L}
v_add_u32 v58, {CNT}, v58
s_cmp_lg_u32 s{w}, 0
s_cbranch_scc1 B_i1
v_sub_u32 v59, 63, v{L}
ds_write_b32 v58, v59
ds_write_b32 v58, v52 offset:256
v_cmp_eq_u32 vcc, 12, v{L}
v_mov_b32 v59, -1
v_mov_b32 v60, 0x1000
v_cndmask_b32 v59, v59, v60, vcc
v_cmp_gt_u32 vcc, 4, v{L}
s_mov_b64 exec, 0xffff
s_nop 0
v_cndmask_b32 v59, v59, v52, vcc
ds_write_b32 v58, v59 offset:1024
s_mov_b64 exec, -1
B_i1:
s_waitcnt lgkmcnt(0)
s_barrier
v_mov_b32 v59, {MAX}
ds_max_u32 v59, v45
v_mov_b32 v60, 64
s_waitcnt vmcnt(0)'''.format(t=vTid,DA=L_DA,n3=STEPCAP*2-512,dYA=L_YA-L_DA,dYA2=L_YA-L_DA+8192,L=vLane,CNT=L_CNT,w=sWave,MAX=L_MAX))
    stamp(a,opt,2)
    if opt.get('pf',0)&2: pf(opt['pf']&1,120)
    if opt.get('pf',0)&4: pf2(122)
    a('s_mov_b32 s3, %d',L_CNT)
    for j in range(J):
        a('s_mov_b64 exec, %s\ns_cbranch_execz B_c_done\nv_bfe_u32 v%d, v%d, 16, 6\nv_lshl_add_u32 v%d, v%d, 2, s3\nds_add_rtn_u32 v%d, v%d, v60',
          sr(sEX+2*j,2),36+j,4*j+3,36+j,36+j,28+j,36+j)
        m=4*j; c=88+4*j
        a('v_and_b32 v%d, 0xffff0000, v%d\nv_and_b32 v%d, 0xffff0000, v%d\nv_and_b32 v%d, 0xffff0000, v%d\nv_and_b32 v%d, 0xffff, v%d\nv_min_u32 v%d, 9999, v%d\nv_lshlrev_b32 v%d, 10, v%d',
          c,m,c+1,m+1,c+2,m+2,c+3,m+3,c+3,c+3,c+3,c+3)
        if de: a('v_lshrrev_b32 v%d, 22, v%d\nv_add_lshl_u32 v%d, v%d, v48, 5',m+3,m+3,m+3,m+3)
        else: a('v_add_u32 v%d, %d, v47',m+3,96*j+16)
    a('''B_c_done:
s_mov_b64 exec, -1
s_waitcnt lgkmcnt(0)
s_barrier''')
    stamp(a,opt,5,1)
    a('''ds_read_b32 v61, v58
ds_read_b32 v62, v59
s_mul_i32 s3, s{w}, 5
v_mov_b32 v63, 0
s_waitcnt lgkmcnt(0)
v_readfirstlane_b32 s{mx}, v62'''.format(w=sWave,mx=sMax))
    for i in range(5):
        a('v_readlane_b32 s%d, v61, s3\ns_add_u32 s3, s3, 1\ns_nop 0\nv_cmp_gt_u32 vcc, s%d, v61\ns_nop 1\nv_addc_co_u32 v63, vcc, 0, v63, vcc',sT,sT)
    a('''ds_add_u32 v58, v63 offset:256
s_waitcnt lgkmcnt(0)
s_barrier''')
    stamp(a,opt,6,1)
    a('''v_cmp_gt_u32 vcc, 40, v{L}
ds_read_b32 v63, v58 offset:256
s_waitcnt lgkmcnt(0)
v_cndmask_b32 v63, v{L}, v63, vcc
v_lshlrev_b32 v63, 2, v63
ds_permute_b32 v64, v63, v61
v_and_b32 v65, 1, v{L}
v_cmp_eq_u32 vcc, 0, v65
s_waitcnt lgkmcnt(0)
v_lshrrev_b32 v66, 6, v64
v_and_b32 v64, 63, v64
v_sub_u32 v64, 63, v64
v_mov_b32_dpp v67, v66 quad_perm:[0,0,2,2] row_mask:0xf bank_mask:0xf
v_cndmask_b32 v68, 0, v66, vcc'''.format(L=vLane))
    scan(a,68)
    a('''v_sub_u32 v69, v68, v67
v_readlane_b32 s3, v68, 63
v_lshl_add_u32 v69, v69, 1, v65
v_lshlrev_b32 v70, 2, v64
v_add_u32 v70, {NB}, v70
ds_write_b32 v70, v69
v_cmp_eq_u32 vcc, 0, v67
v_mul_u32_u24 v64, {PROW}, v64
v_mov_b32 v70, 0x100000
s_add_u32 s3, s3, 7
s_lshr_b32 s3, s3, 3
v_cndmask_b32 v64, v64, v70, vcc
v_cndmask_b32 v{pend}, v68, v70, vcc
ds_write_b32 v58, v64 offset:768
s_max_u32 s{Ls}, s3, 16
s_cmp_le_u32 s{Ls}, {cap}
s_cbranch_scc1 B_fit
s_cmp_gt_u32 s{wd}, 2
s_cselect_b32 s{wd}, 2, 1
s_waitcnt lgkmcnt(0)
s_barrier
s_branch B_round
B_fit:
v_cvt_f32_u32 v71, s{Ls}
v_rcp_f32 v71, v71
s_mov_b32 s{T}, {DA}
v_mul_f32 v72, 0.5, v71'''.format(NB=L_NB,PROW=PROW,pend=vPend,Ls=sL,cap=STEPCAP//8,wd=sWd,T=sT,DA=L_DA))
    a('v_readlane_b32 s3, v67, 38\ns_or_b32 s3, s3, s%d\ns_cbranch_scc1 B_nozero',sI0)
    a('v_mov_b32 v124, 0\nv_mov_b32 v125, 0\nv_mov_b32 v126, 0\nv_mov_b32 v127, 0\nv_lshlrev_b32 v120, 4, v%d\nv_add_u32 v121, 0x10000, v120'%vTid)
    for i in range(13): a('ds_write_b128 v%d, v[124:127] offset:%d',120 if i<8 else 121,(i&7)*8192)
    a('v_cmp_gt_u32 vcc, %d, v249\ns_mov_b64 exec, vcc\nds_write_b128 v121, v[124:127] offset:%d\ns_mov_b64 exec, -1',(L_W-13*8192)//16,5*8192)
    a('B_nozero:')
    stamp(a,opt,7,1)
    for j in range(J):
        a('s_mov_b64 exec, %s\ns_cbranch_execz B_n_done\nds_read_b32 v%d, v%d offset:%d',sr(sEX+2*j,2),36+j,36+j,L_NB-L_CNT)
    a("""B_n_done:
s_mov_b64 exec, -1
s_mul_i32 s{c0}, s{w}, s{L}
s_add_u32 s{en}, s{c0}, s{L}
s_mov_b32 s{cur}, s{c0}
s_cmp_eq_u32 s{i0}, 0
s_cselect_b32 s{thr}, s{en}, 0
s_and_b32 s3, s{L}, 15
s_sub_u32 s{u0}, 16, s3
s_lshr_b32 s{it}, s{L}, 4
s_lshl_b32 s{L32}, s{L}, 5
s_sub_u32 s{bk}, 512, s{L32}
s_mov_b32 s{ph}, 0
s_movk_i32 s{inc}, 512
s_mov_b32 s{wi}, 0
s_mov_b32 s{xa}, 0
v_cmp_ge_u32 vcc, s{c0}, v{pend}
v_lshrrev_b32 v80, 2, v{kh}
v_mov_b32 v{lp}, v{LOFF}
v_mov_b32 v{xo}, v{LOFF}
v_lshlrev_b32 v{wad}, 4, v{lane}
s_bcnt1_i32_b64 s{p2}, vcc
s_mov_b32 s{p20}, s{p2}
v_add_u32 v{wad}, {LW}, v{wad}
s_lshl_b32 s3, s{p2}, 2
s_add_u32 s3, s3, {ROW}
v_add_u32 v{rp}, s3, v80
v_mov_b32 v80, s{L32}
s_waitcnt lgkmcnt(0)""".format(**K))
    for j in range(J):
        a("""s_mov_b64 exec, {ex}
s_cbranch_execz B_s_done
v_lshrrev_b32 v73, 6, v{pos}
v_lshl_add_u32 v73, v73, 1, v{nb}
v_lshrrev_b32 v75, 1, v73
v_cvt_f32_u32 v74, v75
v_fma_f32 v74, v74, v71, v72
v_cvt_u32_f32 v74, v74
v_mad_u32_u24 v74, v74, s{L}, {SH}
v_cmp_lt_u32 vcc, v75, v74
v_lshl_add_u32 v73, v73, 4, s{T}
ds_write_b128 v73, {mv}
v_cndmask_b32 v74, 0, v80, vcc
ds_write_b96 v73, {cv} offset:{ya}
v_add_u32 v74, v74, v73
ds_write_b32 v74, v{c3} offset:{yw}""".format(ex=sr(sEX+2*j,2),pos=28+j,nb=36+j,mv=vr(4*j,4),cv=vr(88+4*j,3),c3=88+4*j+3,ya=L_YA-L_DA,yw=L_YA-L_DA+12-32*SH,L=sL,T=sT,SH=SH))
    a("""B_s_done:
s_mov_b64 exec, -1
s_lshl_b32 s3, s{c0}, 5
s_add_u32 s3, s3, {DA}
v_add_u32 v82, s3, v{kh}
s_lshl_b32 s{T}, s{u0}, 5
s_sub_u32 s3, s3, s{T}
s_add_u32 s3, s3, 12
v_add_u32 v83, s3, v{pat}
v_add_u32 v{rec}, 512, v83
v_mov_b32 v85, {LC}
v_cmp_eq_u32 vcc, 1, v{dam}
s_cmp_gt_u32 s{u0}, 15
s_cselect_b32 s3, 512, 0
v_cndmask_b32 v85, v85, v82, vcc
s_sub_u32 s3, s3, s{T}
s_add_u32 s3, s3, {dYA}
v_add_u32 v{ya}, s3, v82
s_cmp_gt_u32 s{u0}, 14
s_cselect_b32 s3, 512, 0
s_sub_u32 s3, s3, s{T}
v_mad_i32_i24 v{da}, v{dam}, s3, v85
v_add_u32 v81, s{L32}, v82
s_sub_u32 s3, 0x3e0, s{T}""".format(**K))
    stamp(a,opt,8,1)
    for r in range(DEP):
        a('s_and_b32 s3, s3, %d\nv_add_u32 v%d, s3, v81\ns_add_u32 s3, s3, 32',32*DEP-32,F0+r)
    a('s_add_u32 s%d, s%d, 1\ns_and_b32 s%d, s%d, %d\ns_waitcnt lgkmcnt(0)\ns_barrier',sInc8,sU0,sInc8,sInc8,DEP-1)
    stamp(a,opt,3)
    e=Asm(); yw=L_YA-L_DA+12-32*SH
    if not opt.get('noprio'): e('s_setprio 3')
    e('ds_read_b32 v%d, v81 offset:%d',F0+8,yw)
    e('ds_read_b32 v86, v83\nds_read_b32 v%d, v%d',vRecA,vREC)
    for r in range(DEP): e('ds_read_b32 v%d, v%d offset:%d',F0+r,F0+r,yw+32)
    e('ds_read_b128 %s, v85\nds_read_b128 %s, v82 offset:%d\ns_waitcnt lgkmcnt(%d)',vr(ACC+8,4),vr(Y0,4),L_YA-L_DA,DEP+2)
    e('v_add_u32 v%d, v%d, v%d\nv_add_u32 v86, v%d, v86\nv_add_u32 v%d, v%d, v%d',F0+8,F0+8,LOFF,vKh16,vRecA,vKh16,vRecA)
    e(eald(EA,86)); e(eald(ACC,vRecA))
    for l in xloads(ACC+4,F0+8): e(l)
    e('s_waitcnt lgkmcnt(0)')
    e('s_setprio 0')
    for r in range(DEP): e('v_add_u32 v%d, v%d, v%d',F0+r,F0+r,LOFF)
    for r in range(1,DEP): e('s_cmp_eq_u32 s%d, %d\ns_cbranch_scc1 B_x%d',sInc8,r,r)
    for r in range(DEP):
        e('B_x%d:',r)
        for l in xloads(X0+4*r,F0+r): e(l)
    for r in range(DEP-1):
        e('s_cmp_le_u32 s%d, %d\ns_cbranch_scc1 B_xd',sInc8,r)
        for l in xloads(X0+4*r,F0+r): e(l)
    e('B_xd:\nglobal_load_dword v%d, v%d, s[4:5]',vJunk,LOFF)
    e('ds_read_b128 %s, v85 offset:32',vr(D,4))
    for l in perms(ACC+8): e(l)
    for i in range(4): e('v_mov_b32 v%d, v%d',Y0+4+i,Y0+i)
    for l in nextseg(): e(l)
    def cpy(m): return 's_mov_b64 exec, %s\n'%sr(m,2)+''.join('v_mov_b32 v%d, v%d\n'%(EA+i,ACC+i) for i in range(4))+'s_mov_b64 exec, -1'
    mF=['v_mfma_f32_32x32x16_bf16 %s, %s, %s, 0'%(vr(F0+16*b,16),vr(COEF,4),vr(ACC+4,4)) for b in range(2)]
    e('s_cmp_gt_u32 s%d, 8\ns_cbranch_scc1 B_entB',sU0)
    eA=Asm()
    for p in range(5): eA(wread(p,1,24*p+4)); eA(wread(p,0,park(p,0)))
    eA('s_waitcnt vmcnt(%d) lgkmcnt(0)'%(4*DEP+5))
    for p in range(5): eA(mfR(p,1,24*p+4))
    for p in range(5): eA(mfR(p,0,park(p,0)))
    eA('s_waitcnt vmcnt(%d)'%(4*DEP+1)); eA(mF[0]); eA(mF[1]); eA(cpy(sMhi)); eA('s_nop 7\ns_cmp_le_u32 s%d, 4\ns_cbranch_scc1 B_go',sU0)
    for p in range(5): eA(wread(p,1,park(p,8)))
    eA('s_branch B_go')
    eB=Asm()
    pk=lambda p: W4 if p==4 else 24*(p+1)+20
    for p in range(5): eB(wread(p,0,24*p+16)); eB(wread(p,1,pk(p)))
    eB('s_waitcnt vmcnt(%d) lgkmcnt(0)'%(4*DEP+5)); eB(cpy(sMhi)); eB('s_nop 1')
    for p in range(5): eB(mfR(p,0,24*p+16))
    for p in range(5): eB(mfR(p,1,pk(p)))
    eB('s_waitcnt vmcnt(%d)'%(4*DEP+1)); eB(mF[0]); eB(mF[1]); eB(cpy(sMlo)); eB('s_nop 7\ns_cmp_le_u32 s%d, 12\ns_cbranch_scc1 B_go',sU0)
    for p in range(5): eB(wread(p,0,park(p,0)))
    for x in (eA,eB): check_seq(e.lines+x.lines+step(0,True),'entry')
    a.lines+=e.lines+eA.lines; a('B_entB:'); a.lines+=eB.lines
    a('B_go:\ns_waitcnt lgkmcnt(0)')
    if not opt.get('noprio'): a('s_cmp_lt_u32 s%d, 4\ns_cbranch_scc1 B_go2\ns_setprio 1\nB_go2:',sWave)
    stamp(a,opt,4)
    for u in range(1,16): a('s_cmp_eq_u32 s%d, %d\ns_cbranch_scc1 B_M%d',sU0,u,u)
    a('s_branch B_M0')
    a('.p2align 6')
    for u in range(16):
        a('B_N%d:',u); a('\n'.join(step(u,False))); a('s_cbranch_scc1 B_FL%d',u)
        check_seq(step((u-1)&15,False)+step(u,False)+step((u+1)&15,False),'N%d'%u)
    a('s_branch B_N0')
    for u in range(16):
        a('B_M%d:',u); a('\n'.join(step(u,True))); a('s_cbranch_scc0 B_N%d',(u+1)&15)
        a('B_FL%d:',u); a('\n'.join(flush(u)))
        if u<15: a('s_cbranch_scc1 B_exit'); a('\n'.join(nextseg()))
    a('s_cbranch_scc0 B_seg0\ns_cmp_eq_u32 s%d, 1\ns_cbranch_scc1 B_exit',sPhase)
    if opt.get('dbg') and not opt.get('fine'): a('s_memrealtime s[80:81]')
    a('\n'.join(restart()))
    a('B_seg0:'); a('\n'.join(nextseg())); a('s_branch B_M0')
    check_seq(step(15,False)+flush(15)+restart()+nextseg()+step(0,True),'restart')
    for b in range(2): a('\n'.join(addold(b)))
    a('B_exit:')
    stamp(a,opt,6)
    a('''s_add_u32 s{i0}, s{i0}, s{wd}
s_cmp_ge_u32 s{i0}, s{mx}
s_cbranch_scc1 B_gemm
s_waitcnt vmcnt(0) lgkmcnt(0)
s_nop 7
s_barrier
s_branch B_round'''.format(i0=sI0,wd=sWd,mx=sMax))
    gemm(a,opt)
    a('B_end:\ns_endpgm')

def gemm(a,opt):
    G=Asm(); OA=80; RB=124; NR=7
    G('''B_gemm:
s_waitcnt lgkmcnt(0)
s_mul_i32 s3, s{w}, 20480
s_add_u32 s3, s3, {WF}
v_lshlrev_b32 v{t}, 4, v{L}
s_nop 7'''.format(w=sWave,WF=WF,t=vTmp,L=vLane))
    H0=[s for s in range(20) if not s&2]; H1=[s for s in range(20) if s&2]
    for i in range(1,5): G('s_add_u32 s%d, s3, %d',sEX+i,4096*i)
    for s in H0+H1:
        G('buffer_load_dwordx4 %s, v%d, %s, s%d offen offset:%d',vr(4*s,4),vTmp,sr(sWS,4),sEX+s//4 if s>3 else 3,(s&3)*1024)
    Pa,Pb0,Pb1,Oa,Ob0,Ob1=ACC,ACC+1,ACC+2,ACC+3,ACC+4,ACC+5
    G('''v_and_b32 v{x}, 15, v{L}
v_lshrrev_b32 v{y}, 4, v{L}
v_mul_u32_u24 v{Pa}, {PROW}, v{x}
v_lshl_add_u32 v{Pa}, v{y}, 4, v{Pa}
s_lshl_b32 s3, s{w}, 5
s_add_u32 s3, s3, {LW}
v_lshl_add_u32 v{z}, v{y}, 3, s3
s_movk_i32 s3, 1040
v_mad_u32_u24 v{Oa}, v{x}, s3, v{z}
v_and_b32 v{x}, 7, v{L}
v_add_u32 v{x}, 32, v{x}
v_mul_u32_u24 v{Pb0}, {PROW}, v{x}
v_lshl_add_u32 v{Pb0}, v{y}, 4, v{Pb0}
v_mad_u32_u24 v{Ob0}, v{x}, s3, v{z}
v_bfe_u32 v{y}, v{L}, 3, 1
v_mul_u32_u24 v{x}, 768, v{y}
v_add_u32 v{Pb1}, v{Pb0}, v{x}
v_lshl_add_u32 v{Ob1}, v{y}, 8, v{Ob0}
s_cmp_lt_u32 s{w}, 4
s_cbranch_scc1 B_gw
s_barrier
s_branch B_g1
B_gw:
v_and_b32 v{x}, 7, v{L}
v_lshlrev_b32 v{x}, 2, v{x}
v_add_u32 v{x}, {FL}, v{x}
v_mov_b32 v{z}, 128
B_gspin:
ds_read_b32 v{y}, v{x}
s_waitcnt lgkmcnt(0)
v_cmp_gt_i32 vcc, v{z}, v{y}
s_cmp_lg_u64 vcc, 0
s_cbranch_scc1 B_gspin
B_g1:'''.format(x=ACC+6,y=ACC+7,z=ACC+8,L=vLane,Pa=Pa,Pb0=Pb0,Pb1=Pb1,Oa=Oa,Ob0=Ob0,Ob1=Ob1,PROW=PROW,n0=sN0,T=sT,w=sWave,nn=sNN,FL=L_FLAG,LW=L_W))
    stamp(G,opt,7)
    t0=[(0,Pa,0),(1,Pa,16*PROW),(2,Pb0,0)]
    t1=[(3+3*t+j,Pa,16*PROW*t+512+768*j) for t in range(2) for j in range(3)]+[(9,Pb1,512),(10,Pb0,512+1536)]
    ko=lambda s:64*(s if s<8 else s-8)
    def run(ops,extra,vm):
        rd=lambda i:'ds_read_b128 %s, v%d offset:%d'%(vr(RB+4*(i%NR),4),ops[i][2],ops[i][3])
        q=[]
        for i in range(NR-1): G(rd(i)); q.append(i)
        for i,(s,ac,ad,off) in enumerate(ops):
            if i+NR-1<len(ops): G(rd(i+NR-1)); q.append(i+NR-1)
            w='lgkmcnt(%d)'%(len(q)-1-q.index(i))
            if i in vm: w='vmcnt(%d) '%vm[i]+w
            G('s_waitcnt '+w)
            acc=vr(OA+4*ac,4)
            G('v_mfma_f32_16x16x32_bf16 %s, %s, %s, %s',acc,vr(4*s,4),vr(RB+4*(i%NR),4),'0' if s in(0,8) else acc)
            n=0
            while extra and extra[0][0]<=i and n<opt.get('nx',2):
                l=extra.pop(0)[1]; G(l); n+=1
                if l.startswith('ds_'): q.append(-1)
    ops=[]; vm={}
    for n,s in enumerate(H0):
        vm[len(ops)]=19-n; ops+=[(s,ac,ad,off+ko(s)) for ac,ad,off in (t0 if s<8 else t1)]
    run(ops,[],vm)
    G('s_cmp_ge_u32 s%d, 4\ns_cbranch_scc1 B_g2\ns_barrier\nB_g2:',sWave)
    stamp(G,opt,8)
    st=lambda d,ad,off,so='0':'ds_write_b64 v%d, %s offset:%d'%(ad,vr(d,2),off+(16*1040 if so=='s3' else 0))
    ops=[(s,ac,ad,off+ko(s)) for s in H1[:4] for ac,ad,off in t0]; vm={0:6,12:0}
    ex=[]
    for t in range(3):
        sig=[]
        for c in range(4*t,4*t+4):
            r=OA+c; g=X0+c
            sig+=['v_mul_f32 v%d, 0xbfb8aa3b, v%d'%(g,r),'v_exp_f32 v%d, v%d'%(g,g),'v_add_f32 v%d, 1.0, v%d'%(g,g),'v_rcp_f32 v%d, v%d'%(g,g)]
        r=OA+4*t
        ex+=[(14,sig[4*c+k]) for k in range(4) for c in range(4)]
        ex+=[(14,'v_cvt_pk_bf16_f32 v%d, v%d, v%d'%(r,r,r+1)),(14,'v_cvt_pk_bf16_f32 v%d, v%d, v%d'%(r+1,r+2,r+3)),(14,st(r,Oa if t<2 else Ob0,0,'s3' if t==1 else '0'))]
        for n,(ac,ad,off) in list(enumerate(t1))[3*t:3*t+3]:
            ops+=[(s,ac,ad,off+ko(s)) for s in H1[4:]]
            gt=X0+4*t; r=OA+4*ac; rdy=len(ops)+3
            ex+=[(rdy,'v_mul_f32 v%d, v%d, v%d'%(r+k,r+k,gt+k)) for k in range(4)]
            ex+=[(rdy,'v_cvt_pk_bf16_f32 v%d, v%d, v%d'%(r,r,r+1)),(rdy,'v_cvt_pk_bf16_f32 v%d, v%d, v%d'%(r+1,r+2,r+3))]
            ex.append((rdy,st(r,Oa,256*(1+n%3),'s3' if n>=3 else '0') if n<6 else st(r,Ob1 if n==6 else Ob0,256 if n==6 else 768)))
    ex.sort(key=lambda x:x[0])
    run(ops,ex,vm)
    G('s_nop 7')
    for _,l in ex: G(l)
    G('''s_mul_i32 s3, s{w}, 5200
s_add_u32 s3, s3, {LW}
v_add_u32 v0, s3, v{t}
s_mul_i32 s3, s{w}, 5
s_add_u32 s3, s3, s{n0}
s_lshl_b32 s3, s3, 10
s_add_u32 s{T}, s3, 4096
s_add_u32 s{o2}, s{n0}, s{nn}
s_lshl_b32 s{o2}, s{o2}, 10
s_waitcnt lgkmcnt(0)
s_barrier'''.format(w=sWave,LW=L_W,t=vTmp,n0=sN0,nn=sNN,T=sT,o2=sOUT+2))
    for i in range(5): G('ds_read_b128 %s, v0 offset:%d',vr(4+4*i,4),1040*i)
    for i in range(5): G('s_waitcnt lgkmcnt(%d)\nbuffer_store_dwordx4 %s, v%d, %s, s%d offen offset:%d%s',4-i,vr(4+4*i,4),vTmp,sr(sOUT,4),3 if i<4 else sT,(i&3)*1024,{0:'',1:' sc1',2:' nt',3:' sc0 sc1'}[opt.get('of',0)])
    check_seq(G.lines,'gemm')
    a.lines+=G.lines
    if opt.get('dbg'):
        a('s_waitcnt vmcnt(0)'); stamp(a,opt,9)
        a('s_lshl_b32 s3, s2, 3\ns_add_u32 s3, s3, s%d\ns_lshl_b32 s3, s3, 6\ns_add_u32 s3, s3, %d\nv_mov_b32 v20, 0',sWave,STAMP+0x10000)
        for i in range(10): a('v_mov_b32 v%d, s%d',i,70+2*i)
        a('v_mov_b32 v10, s%d\ns_sub_u32 s4, s94, s92\nv_mov_b32 v11, s4\n; clk %d %d',sL,opt.get('c0',4),opt.get('c1',6))
        for i in range(3): a('buffer_store_dwordx4 %s, v20, %s, s3 offen offset:%d',vr(4*i,4),sr(sWS,4),16*i)
```

```python
from asmlib import *
TAB=0; WF=0x40000; WR=WF+160*1024; REC=0x80000; EAO=REC+160000*16; WSSZ=REC+160000*48; STAMP=0x900000
def srd(a,d,b,n,stride=0):
    a('s_mov_b32 s%d, s%d',d,b)
    if stride: a('s_and_b32 s%d, s%d, 0xffff\ns_or_b32 s%d, s%d, 0x%x',d+1,b+1,d+1,d+1,stride<<16)
    else: a('s_and_b32 s%d, s%d, 0xffff',d+1,b+1)
    a('s_mov_b32 s%d, %d\ns_mov_b32 s%d, 0x20000',d+2,n,d+3)
def scan(a,v):
    for sh in (1,2,4,8):
        a('s_nop 1\nv_add_u32_dpp v%d, v%d, v%d row_shr:%d row_mask:0xf bank_mask:0xf',v,v,v,sh)
    a('s_nop 1\nv_add_u32_dpp v%d, v%d, v%d row_bcast:15 row_mask:0xa bank_mask:0xf',v,v,v)
    a('s_nop 1\nv_add_u32_dpp v%d, v%d, v%d row_bcast:31 row_mask:0xc bank_mask:0xf',v,v,v)
def genA(a,opt):
    a('''.globl sort_kernel
.p2align 8
.type sort_kernel,@function
sort_kernel:
s_cmp_ge_u32 s2, 250
s_cbranch_scc1 A_end''')
    if opt.get('dbg'): a('s_memrealtime s[70:71]')
    a('''s_load_dwordx16 s[36:51], s[0:1], 0
s_load_dwordx2 s[52:53], s[0:1], 88
s_mul_i32 s3, s2, 640
v_add_u32 v1, s3, v0
v_lshlrev_b32 v2, 2, v1
v_mul_u32_u24 v3, 6, v1
v_lshlrev_b32 v4, 5, v1
v_lshlrev_b32 v5, 2, v0
v_mov_b32 v6, 0
v_lshrrev_b32 v7, 6, v0
ds_write_b32 v5, v6
v_and_b32 v30, 63, v0
v_readfirstlane_b32 s54, v7
s_waitcnt lgkmcnt(0)''')
    srd(a,4,44,640000); a('buffer_load_dword v8, v2, s[4:7], 0 offen')
    srd(a,8,42,640000); a('buffer_load_dword v9, v2, s[8:11], 0 offen')
    srd(a,12,38,960000)
    a('buffer_load_ushort v10, v3, s[12:15], 0 offen\nbuffer_load_ushort v11, v3, s[12:15], 0 offen offset:2\nbuffer_load_ushort v12, v3, s[12:15], 0 offen offset:4')
    de=opt.get('de')
    if not de:
        srd(a,16,40,5120000)
        a('buffer_load_dwordx4 v[16:19], v4, s[16:19], 0 offen\nbuffer_load_dwordx4 v[20:23], v4, s[16:19], 0 offen offset:16')
    srd(a,20,52,WSSZ if not opt.get('dbg') else STAMP+0x100000)
    npre=0
    if opt.get('apf'):
        srd(a,28,36,10240000)
        a('v_lshlrev_b32 v13, 6, v1\nbuffer_load_dword v40, v13, s[28:31], 0 offen'); npre=1
    a('''s_barrier
s_mov_b32 s55, 214749
s_waitcnt vmcnt(%d)
@1
v_mul_u32_u24 v13, s55, v8
v_lshrrev_b32 v13, 23, v13
v_lshlrev_b32 v14, 2, v13
v_mov_b32 v6, 1
ds_add_rtn_u32 v15, v14, v6
s_movk_i32 s55, 625
v_mad_u32_u24 v13, v13, s55, 15
v_lshrrev_b32 v13, 4, v13
v_sub_u32 v13, v8, v13
v_lshl_or_b32 v13, v0, 6, v13''',(4 if de else 6)+npre)
    a('''s_mov_b32 s56, 0
s_cmp_lg_u32 s54, 1
s_cbranch_scc1 A_now
s_cmp_ge_u32 s2, 180
s_cbranch_scc1 A_now
s_mov_b32 s56, 1
s_mov_b32 s27, 0x20000
s_cmp_ge_u32 s2, 160
s_cbranch_scc1 A_rad
s_mul_i32 s57, s2, 205
s_lshr_b32 s57, s57, 12
s_mul_i32 s58, s57, 20
s_sub_u32 s58, s2, s58
s_cmp_lt_u32 s58, 8
s_cselect_b32 s24, s48, s50
s_cselect_b32 s25, s49, s51
s_mov_b32 s26, 0x18000
s_cselect_b32 s26, 0x10000, s26
s_cselect_b32 s59, 0, 8
s_sub_u32 s58, s58, s59
s_and_b32 s25, s25, 0xffff
s_lshl_b32 s58, s58, 13
s_lshl_b32 s57, s57, 5
s_add_u32 s58, s58, s57
v_lshrrev_b32 v31, 4, v30
v_lshlrev_b32 v31, 11, v31
v_and_b32 v32, 15, v30
v_lshl_add_u32 v31, v32, 1, v31
s_movk_i32 s60, 256
s_branch A_wld
A_rad:
s_sub_u32 s57, s2, 160
s_mul_i32 s58, s57, 52
s_lshr_b32 s58, s58, 8
s_mul_i32 s59, s58, 5
s_sub_u32 s57, s57, s59
s_lshl_b32 s57, s57, 8
s_and_b32 s59, s58, 1
s_lshl_b32 s59, s59, 1
s_lshr_b32 s58, s58, 1
s_lshl_b32 s58, s58, 7
s_add_u32 s58, s58, s57
s_add_u32 s58, s58, s59
s_mov_b32 s24, s46
s_and_b32 s25, s47, 0xffff
s_mov_b32 s26, 20480
v_lshrrev_b32 v31, 5, v30
v_mul_u32_u24 v31, 10240, v31
v_and_b32 v32, 31, v30
v_lshl_add_u32 v31, v32, 2, v31
s_movk_i32 s60, 1280
A_wld:''')
    for i in range(8):
        a('buffer_load_ushort v%d, v31, s[24:27], s58 offen\ns_add_u32 s58, s58, s60',48+i)
    a('''A_now:
s_waitcnt lgkmcnt(0)
s_barrier
v_lshlrev_b32 v5, 4, v30
ds_read_b128 v[24:27], v5
s_waitcnt lgkmcnt(0)
v_add_u32 v28, v24, v25
v_add3_u32 v28, v28, v26, v27
v_mov_b32 v29, v28''')
    scan(a,28)
    a('''v_sub_u32 v32, v28, v29
v_add_u32 v33, v32, v24
v_add_u32 v34, v33, v25
v_add_u32 v35, v34, v26
ds_write_b128 v5, v[32:35] offset:4096
ds_read_b32 v14, v14 offset:4096
s_cmp_lg_u32 s54, 0
s_cbranch_scc1 A_notab
v_lshl_or_b32 v24, v24, 16, v32
v_lshl_or_b32 v25, v25, 16, v33
v_lshl_or_b32 v26, v26, 16, v34
v_lshl_or_b32 v27, v27, 16, v35
s_lshl_b32 s57, s2, 5
v_lshrrev_b32 v28, 1, v30
v_and_b32 v29, 1, v30
v_lshlrev_b32 v29, 4, v29
v_lshl_add_u32 v28, v28, 13, v29
buffer_store_dwordx4 v[24:27], v28, s[20:23], s57 offen
A_notab:
@4
s_waitcnt vmcnt(0)
@2
v_xor_b32 v28, 0x8000, v11
v_xor_b32 v29, 0x8000, v12
v_xor_b32 v31, 0x8000, v10
v_lshl_or_b32 v44, v10, 16, v28
v_lshl_or_b32 v45, v11, 16, v29
v_lshl_or_b32 v46, v12, 16, v31
v_lshl_or_b32 v47, v13, 16, v9
s_waitcnt lgkmcnt(0)
''')
    if de: a('''v_add_lshl_u32 v14, v14, v15, 4
ds_write_b128 v14, v[44:47] offset:5120
v_lshlrev_b32 v14, 4, v0
s_mul_i32 s57, s2, 10240
s_add_u32 s57, s57, %d
s_waitcnt lgkmcnt(0)
s_barrier
@3
ds_read_b128 v[44:47], v14 offset:5120
s_waitcnt lgkmcnt(0)
buffer_store_dwordx4 v[44:47], v14, s[20:23], s57 offen''',REC)
    else: a('''v_add_lshl_u32 v14, v14, v15, 4
v_lshlrev_b32 v15, 1, v14
ds_write_b128 v14, v[44:47] offset:5120
ds_write_b128 v15, v[16:19] offset:15360
ds_write_b128 v15, v[20:23] offset:15376
v_lshlrev_b32 v14, 4, v0
s_mul_i32 s57, s2, 10240
s_lshl_b32 s58, s57, 1
s_add_u32 s57, s57, %d
s_add_u32 s58, s58, 3084288
s_add_u32 s59, s58, 10240
s_waitcnt lgkmcnt(0)
s_barrier
@3
ds_read_b128 v[44:47], v14 offset:5120
ds_read_b128 v[16:19], v14 offset:15360
ds_read_b128 v[20:23], v14 offset:25600
s_waitcnt lgkmcnt(2)
buffer_store_dwordx4 v[44:47], v14, s[20:23], s57 offen
s_waitcnt lgkmcnt(1)
buffer_store_dwordx4 v[16:19], v14, s[20:23], s58 offen
s_waitcnt lgkmcnt(0)
buffer_store_dwordx4 v[20:23], v14, s[20:23], s59 offen
''',REC)
    a('''s_cmp_eq_u32 s56, 0
s_cbranch_scc1 A_fin
s_lshl_b32 s57, s2, 10
s_add_u32 s57, s57, %d
v_lshl_or_b32 v36, v49, 16, v48
v_lshl_or_b32 v37, v51, 16, v50
v_lshl_or_b32 v38, v53, 16, v52
v_lshl_or_b32 v39, v55, 16, v54
buffer_store_dwordx4 v[36:39], v5, s[20:23], s57 offen
A_fin:''',WF)
    if opt.get('dbg'):
        a('''s_waitcnt vmcnt(0)
@0
s_waitcnt lgkmcnt(0)
v_mov_b32 v0, s70
v_mov_b32 v1, s72
s_mul_i32 s57, s2, 10
s_add_u32 s57, s57, s54
s_lshl_b32 s57, s57, 3
s_add_u32 s57, s57, %d
v_mov_b32 v2, 0
buffer_store_dwordx2 v[0:1], v2, s[20:23], s57 offen''',STAMP)
    a('A_end:\ns_endpgm')
    a.lines=[('    s_memrealtime s[72:73]\n    s_waitcnt lgkmcnt(0)' if l.strip()[0]=='@' else l) for l in a.lines if l.strip()[0]!='@' or (opt.get('dbg') and int(l.strip()[1])==opt.get('ast',0))]
```

```python
from asmlib import *
from kA import *
PROW=2848
L_P=0; L_W=40*PROW; STEPCAP=432
L_DA=L_W+20480; L_YA=L_DA+STEPCAP*32; L_CONST=L_YA+STEPCAP*32
L_CNT=L_CONST+512; L_RANK=L_CNT+256; L_NB=L_RANK+256; L_ROW=L_NB+256; L_MAX=L_ROW+256; L_FLAG=L_MAX+16; L_END=L_FLAG+48
assert L_END<=163840 and L_CONST%16==0
OPT={}
J=7; DEP=4; SH=DEP+1
F0=120; X0=152; ACC=184; IDX=206; LOFF=207; COEF=208; D=212; Y0=216; EA=224; W4=228; SEL=232
vDA=235; vYA=236; vXo=237; vREC=238; vDAm=239; vWad=240; vRecA=241; T0=242; T1=243
vRowP=244; vRow=245; vPend=246; vLaneP=247; vKh16=248; vTid=249; vTab=250; vLane=251; vTmp=252; vFlag=253; vJunk=254; vPat=255
sX=8; sWS=12; sOUT=16; sEX=20
sWave=34; sI0=35; sWd=36; sMax=37; sL=38; sU0=39; sC0=40; sCur=41; sEnd=42; sCnt=43; sP2=44; sP20=45
sPhase=46; sIter=47; sInc=48; sInc8=49; sWinc=50; sXoff=51; sXadd=52; sBack=53; sMhi=54; sMlo=56
sTile=58; sN0=59; sNN=60; sREC=61; sT=62; sThr=63; sRet=66; sFl=68; sPe=69; sEAO=64; sK1=96
def Rr(p,pi,u):
    return 24*p+(((u+8)&15) if pi==0 else (16+u if u<8 else u))
def park(p,u):
    return W4 if p==4 else 24*(p+1)+(0 if u==0 else 8)
def mfR(p,pi,w): d=24*p+8*pi; return 'v_mfma_f32_32x32x16_bf16 %s, %s, %s, 0'%(vr(d,16),vr(EA,4),vr(w,4))
def wread(p,pi,dst): return 'ds_read_b128 %s, v%d offset:%d'%(vr(dst,4),vWad,(pi*5+p)*1024)
def perms(d=D):
    return ['v_perm_b32 v%d, v%d, v%d, v%d'%(COEF+1+j,d+j,d+(j+2)%3,SEL+j) for j in range(3)]
def fmas(u,pi,first):
    fb=F0+16*(u&1)+8*pi; y=Y0+4*(u&1); t=T0+pi
    def op(k,a,b): return ('v_mul_f32' if first else 'v_fmac_f32')+' v%d, v%d, v%d'%(ACC+2*k+pi,a,b)
    o=[op(0,fb,Rr(0,pi,u)),op(1,fb+1,Rr(1,pi,u)),'v_mul_f32 v%d, v%d, v%d'%(t,fb,Rr(2,pi,u))]
    o+=[op(3+3*j,fb+2+j,Rr(3,pi,u)) for j in range(3)]
    o+=[op(2+3*j,t,y+j) for j in range(3)]
    o+=[op(4+3*j,fb+5+j,Rr(4,pi,u)) for j in range(3)]
    return o
def xloads(dst,idx=IDX):
    return ['global_load_dword v%d, v%d, s[4:5] offset:%d'%(dst+j,idx,256*j) for j in range(4)]
def step(u,first):
    o=[]; burst=u in(0,8); pa=1 if u==0 else 0
    f=fmas(u,pa,first)+fmas(u,1-pa,first)
    xr=X0+4*((u+1)&(DEP-1))
    mF='v_mfma_f32_32x32x16_bf16 %s, %s, %s, 0'%(vr(F0+16*((u+1)&1),16),vr(COEF,4),vr(xr,4))
    pre=perms()
    if u==16-SH: pre.append('v_add_u32 v%d, s%d, v%d'%(vXo,sXadd,vXo))
    pre.append('v_add_u32 v%d, v%d, v%d'%(IDX,Y0+4*(u&1)+3,vXo))
    if u==14: pre.append('v_mad_i32_i24 v%d, v%d, s%d, v%d'%(vDA,vDAm,sInc,vDA))
    if u==15: pre.append('v_add_u32 v%d, s%d, v%d'%(vYA,sInc,vYA))
    if u==12: pre.append('v_add_u32 v%d, s%d, v%d'%(vWad,sWinc,vWad))
    tail=['ds_read_b128 %s, v%d offset:%d'%(vr(D,4),vDA,((u+2)&15)*32),
          'ds_read_b128 %s, v%d offset:%d'%(vr(Y0+4*((u+1)&1),4),vYA,((u+1)&15)*32)]
    if (u&7) in (4,5,6):
        nb=8 if u<8 else 0
        for p in {4:(0,1),5:(2,3),6:(4,)}[u&7]: tail.append(wread(p,1 if nb==8 else 0,park(p,nb)))
    tail+=xloads(xr)
    if burst:
        tail+=['s_mov_b64 exec, %s'%sr(sMhi if u==0 else sMlo,2),eald(EA,vRecA),'s_mov_b64 exec, -1']
        o.append('s_waitcnt vmcnt(%d) lgkmcnt(0)'%(4*DEP-4))
        for p in range(5):
            o.append(mfR(p,1-pa,park(p,u)))
            if p==0 and u==0:
                o+=['s_sub_u32 s%d, s%d, 1'%(sIter,sIter),'s_cmp_eq_u32 s%d, 0'%sIter,'s_cselect_b32 s%d, s%d, 512'%(sInc,sBack),
                    's_cselect_b32 s%d, 10240, 0'%sWinc,'s_cselect_b32 s%d, 128, 0'%sXadd,
                    'v_add_u32 v%d, s%d, v%d'%(vREC,sInc,vREC),'ds_read_b32 v%d, v%d'%(vRecA,vREC)]
            if p==2: o+=pre
            else: o+=f[:3]; f=f[3:]
        if u==0: o+=['s_waitcnt lgkmcnt(0)','v_add_u32 v%d, v%d, v%d'%(vRecA,vKh16,vRecA)]
    else:
        o+=f[:4]+['s_waitcnt vmcnt(%d) lgkmcnt(0)'%(4*DEP-4+(1 if (u&7)<=DEP else 0))]+pre+f[4:5]; f=f[5:]
    if OPT.get('late') and u==OPT['late']: tail=tail+['s_cmp_lg_u32 s%d, %d'%(sIter,OPT.get('lit',-1)),'s_cbranch_scc1 1','s_setprio 1']
    o+=[mF]+tail+['s_sub_u32 s%d, s%d, 1'%(sCnt,sCnt)]+f
    return o
def nextseg():
    return ['v_readlane_b32 s%d, v%d, s%d'%(sPe,vPend,sP2),'ds_read_b32 v%d, v%d'%(vRow,vRowP),
            's_min_u32 s%d, s%d, s%d'%(sT,sPe,sEnd),'s_sub_u32 s%d, s%d, s%d'%(sCnt,sT,sCur),
            's_sub_u32 s%d, s%d, 1'%(sCnt,sCnt),'s_mov_b32 s%d, s%d'%(sCur,sT)]
def flush(u,lab=True):
    o=['v_add_u32 v%d, v%d, v%d'%(vTmp,vRow,vLaneP),'s_cmp_lt_u32 s%d, s%d'%(sCur,sThr),'s_cbranch_scc1 B_FP%d'%u,
       's_call_b64 %s, B_add%d'%(sr(sRet,2),u&1),'B_FP%d:'%u]
    for k in range(11):
        o.append('v_cvt_pk_bf16_f32 v%d, v%d, v%d'%(ACC+2*k,ACC+2*k,ACC+2*k+1))
        if k>1 and k%2==0: o.append('ds_write2st64_b32 v%d, v%d, v%d offset0:%d offset1:%d'%(vTmp,ACC+2*k-4,ACC+2*k-2,k-2,k-1))
    o+=['v_add_u32 v%d, 8, v%d'%(vRowP,vRowP),'s_add_u32 s%d, s%d, 2'%(sP2,sP2),
        'ds_write_b32 v%d, v%d offset:2560'%(vTmp,ACC+20),'ds_write_b32 v%d, v%d'%(vFlag,vLaneP),'s_cmp_eq_u32 s%d, s%d'%(sCur,sEnd)]
    return o
def addold(b):
    f=F0+16*b
    o=['B_add%d:'%b,'s_cmp_gt_u32 s%d, s%d'%(sPe,sThr),'s_cbranch_scc0 B_ret%d'%b,'s_lshl_b32 s%d, s%d, 7'%(sFl,sPhase),'s_cmp_eq_u32 s%d, s%d'%(sCur,sEnd),'s_cselect_b32 s%d, s%d, -1'%(sFl,sFl),
       'B_spin%d:'%b,'ds_read_b32 v%d, v%d offset:4'%(f+11,vFlag)]
    o+=['ds_read2st64_b32 %s, v%d offset0:%d offset1:%d'%(vr(f+k,2),vTmp,k,k+1) for k in range(0,10,2)]
    o+=['ds_read_b32 v%d, v%d offset:2560'%(f+10,vTmp),'s_waitcnt lgkmcnt(0)','v_readfirstlane_b32 s%d, v%d'%(sT,f+11),
        's_cmp_lt_i32 s%d, s%d'%(sT,sFl),'s_cbranch_scc1 B_spin%d'%b]
    for k in range(11):
        o+=['v_dot2c_f32_bf16 v%d, s%d, v%d'%(ACC+2*k,sK1,f+k),'v_dot2c_f32_bf16 v%d, s%d, v%d'%(ACC+2*k+1,sK1+1,f+k)]
    o.append('s_nop 1')
    o+=['B_ret%d:'%b,'s_setpc_b64 %s'%sr(sRet,2)]
    return o
def restart():
    o=[wread(p,1,24*p+4) for p in range(5)]
    o+=['s_mov_b32 s%d, 1'%sPhase,'s_mov_b32 s%d, s%d'%(sCur,sC0),'s_sub_u32 s%d, s%d, s%d'%(sT,sP2,sP20),'s_lshl_b32 s%d, s%d, 2'%(sT,sT),
        's_mov_b32 s%d, s%d'%(sP2,sP20),'v_subrev_u32 v%d, s%d, v%d'%(vRowP,sT,vRowP),'v_add_u32 v%d, 128, v%d'%(vLaneP,vLaneP),
        's_lshl_b32 s%d, s%d, 5'%(sT,sEnd),'s_add_u32 s%d, s%d, %d'%(sT,sT,L_YA+12-32*SH),'v_lshl_add_u32 v%d, v%d, 4, s%d'%(T0,vLane,sT),'v_mov_b32 v%d, 0'%T1,
        's_mov_b64 exec, 0x%x'%((1<<(2*SH))-1),'ds_write_b32 v%d, v%d'%(T0,T1),'s_mov_b64 exec, -1',
        's_setprio 1' if not OPT.get('late') else 's_nop 0','s_waitcnt vmcnt(%d) lgkmcnt(0)'%(28 if DEP==8 else 4*DEP)]
    o+=[mfR(p,1,24*p+4) for p in range(5)]
    return o
def stamp(a,opt,i,fine=0):
    if i in (5,6,7,8) and opt.get('fine',0)!=fine: return
    if opt.get('dbg'):
        if i==opt.get('c0',4): a('s_memtime s[92:93]')
        if i==opt.get('c1',6): a('s_memtime s[94:95]')
        a('s_memrealtime s[%d:%d]\ns_waitcnt lgkmcnt(0)',70+2*i,71+2*i)

def eald(d,ad): return 'buffer_load_dwordx4 %s, v%d, %s, %s offen'%((vr(d,4),ad)+((sr(sX,4),'0') if OPT.get('de') else (sr(sWS,4),'s%d'%sEAO)))
K=dict(c0=sC0,w=sWave,L=sL,en=sEnd,cur=sCur,u0=sU0,it=sIter,bk=sBack,ph=sPhase,inc=sInc,wi=sWinc,xo=vXo,xa=sXadd,i0=sI0,thr=sThr,L32=sXoff,
        pend=vPend,kh=vKh16,lp=vLaneP,LOFF=LOFF,wad=vWad,lane=vLane,p2=sP2,p20=sP20,LW=L_W,ROW=L_ROW,rp=vRowP,DA=L_DA,T=sT,
        rec=vREC,LC=L_CONST,dam=vDAm,dYA=L_YA-L_DA,ya=vYA,da=vDA,pat=vPat)
def genB(a,opt,name):
    OPT.clear(); OPT.update(opt); de=opt.get('de'); RS=16
    a('''.globl %s
.p2align 8
.type %s,@function
%s:
s_cmp_ge_u32 s2, 256
s_cbranch_scc1 B_end''',name,name,name)
    stamp(a,opt,0)
    a('''s_load_dwordx2 s[4:5], s[0:1], 0
s_load_dwordx2 s[6:7], s[0:1], 72
s_load_dwordx2 s[64:65], s[0:1], 88
s_load_dwordx2 s[66:67], s[0:1], 16
s_and_b32 s3, s2, 7
s_lshl_b32 s3, s3, 5
s_lshr_b32 s%d, s2, 3
s_add_u32 s%d, s%d, s3''',sTile,sTile,sTile)
    a('''v_mov_b32 v%d, v0
v_and_b32 v%d, 63, v0
v_lshrrev_b32 v1, 6, v0
v_lshrrev_b32 v2, 1, v0
v_readfirstlane_b32 s%d, v1
v_lshlrev_b32 v2, 5, v2
s_lshr_b32 s3, s%d, 3
s_lshl_b32 s3, s3, 11
s_lshr_b32 s62, s2, 3
s_and_b32 s62, s62, 7
s_add_u32 s3, s3, s62
s_lshl_b32 s3, s3, 2
v_lshlrev_b32 v3, 4, v0
v_mov_b32 v%d, 0
v_cmp_gt_u32 vcc, 500, v0
s_mov_b32 s%d, %d
s_waitcnt lgkmcnt(0)''',vTid,vLane,sWave,sTile,vTab,sREC,REC)
    srd(a,sWS,64,WSSZ if not opt.get('dbg') else STAMP+0x100000)
    a('''s_mov_b64 exec, vcc
buffer_load_dword v%d, v2, %s, s3 offen
s_mov_b64 exec, -1
s_mov_b32 s%d, %d''',vTab,sr(sWS,4),sEAO,EAO)
    npf=0
    def pf(rnd,reg):
        a('''s_and_b32 s3, s2, 7
s_mul_i32 s3, s3, 1250
s_lshr_b32 s%d, s2, 3
s_lshl_b32 s%d, s%d, 7
s_add_u32 s3, s3, s%d
s_add_u32 s3, s3, %d
v_lshrrev_b32 v%d, 2, v%d
v_add_u32 v%d, s3, v%d
v_subrev_u32 v%d, 10000, v%d
v_min_u32 v%d, v%d, v%d
v_and_b32 v%d, 3, v%d
v_lshlrev_b32 v%d, 8, v%d
v_lshl_add_u32 v%d, v%d, 10, v%d
global_load_dword v%d, v%d, s[4:5]''',sT,sT,sT,sT,rnd*4096,reg,vTid,reg,reg,reg+1,reg,reg,reg,reg+1,reg+1,vTid,reg+1,reg+1,reg,reg,reg+1,vJunk,reg)
    def pf2(reg):
        a('''s_mul_i32 s3, s2, 160
v_add_u32 v%d, s3, v%d
v_min_u32 v%d, 39999, v%d
v_lshlrev_b32 v%d, 8, v%d
s_cmp_ge_u32 s%d, 3
s_cbranch_scc1 B_nopf2
global_load_dword v%d, v%d, s[4:5] offset:128
B_nopf2:''',reg,vTid,reg,reg,reg,reg,sWave,vJunk,reg)
    if opt.get('pf',0)&1: pf(0,112); npf=1
    srd(a,sOUT,6,10240000); srd(a,sX,66,5120000)
    a('''s_mul_i32 s3, s%d, 625
s_add_u32 s%d, s3, 15
s_lshr_b32 s%d, s%d, 4
s_add_u32 s3, s3, 640
s_lshr_b32 s3, s3, 4
s_sub_u32 s%d, s3, s%d
s_mov_b32 s%d, 0
s_mov_b32 s%d, %d
s_mov_b32 s%d, 0xffff0000
s_mov_b32 s%d, 0xffff0000
s_mov_b32 s%d, 0xffff
s_mov_b32 s%d, 0xffff''',sTile,sN0,sN0,sN0,sNN,sN0,sI0,sWd,2*J,sMhi,sMhi+1,sMlo,sMlo+1)
    a('s_mov_b32 s%d, 0x3f80\ns_mov_b32 s%d, 0x3f800000',sK1,sK1+1)
    a('''v_and_b32 v10, 31, v{L}
v_lshlrev_b32 v{LOFF}, 2, v10
v_lshrrev_b32 v11, 5, v{L}
v_lshlrev_b32 v{kh}, 4, v11
v_bfe_u32 v12, v{L}, 2, 1
v_bfe_u32 v13, v{L}, 3, 1
v_and_b32 v14, 3, v{L}
v_lshl_add_u32 v13, v13, 2, v14
v_bfe_u32 v14, v{L}, 4, 1
v_lshlrev_b32 v14, 4, v14
v_cmp_eq_u32 vcc, v11, v12
v_mov_b32 v15, 8
s_nop 0
v_cndmask_b32 v13, v15, v13, vcc'''.format(L=vLane,LOFF=LOFF,kh=vKh16))
    H,M_,Lo=0x0706,0x0302,0x0504
    for j in range(3):
        tab={1:H,2+j:H,5+(j+1)%3:M_,5+(j+2)%3:Lo}
        a('v_mov_b32 v16, 0')
        for ph,val in tab.items():
            a('v_cmp_eq_u32 vcc, %d, v13\nv_mov_b32 v17, 0x%x\ns_nop 0\nv_cndmask_b32 v16, v16, v17, vcc',ph,val^0x0c0c)
        a('v_lshlrev_b32 v16, v14, v16\nv_xor_b32 v%d, 0x0c0c0c0c, v16',SEL+j)
    a('''v_cmp_eq_u32 vcc, 0, v13
v_mov_b32 v17, 0x3f80
v_lshlrev_b32 v17, v14, v17
v_cndmask_b32 v{C}, 0, v17, vcc
v_subrev_u32 v16, 2, v13
v_cmp_le_u32 vcc, 3, v16
v_mov_b32 v17, 1
v_mov_b32 v16, 0x3f803f80
v_cndmask_b32 v{m}, 0, v17, vcc
v_lshlrev_b32 v18, 2, v0
v_add_u32 v18, {LC}, v18
v_cmp_gt_u32 vcc, 128, v0
s_mov_b64 exec, vcc
s_cbranch_execz B_noc
ds_write_b32 v18, v16
B_noc:
s_mov_b64 exec, -1
v_bfe_u32 v16, v{L}, 3, 2
v_and_b32 v17, 3, v{L}
v_lshl_add_u32 v16, v16, 2, v17
v_xor_b32 v16, 8, v16
v_lshl_add_u32 v16, v16, 1, v12
v_lshlrev_b32 v{pat}, 4, v16
s_lshl_b32 s3, s{w}, 2
s_add_u32 s3, s3, {FL}
v_lshl_add_u32 v{fl}, v{L}, 20, s3
s_waitcnt vmcnt({npf})'''.format(C=COEF,m=vDAm,LC=L_CONST,LW=L_W,w=sWave,L=vLane,pat=vPat,FL=L_FLAG,fl=vFlag,npf=npf))
    a('B_round:')
    stamp(a,opt,1)
    a('''v_and_b32 v44, 1, v{t}
v_add_u32 v44, s{i0}, v44
v_lshrrev_b32 v45, 16, v{tab}
s_add_u32 s3, s{i0}, s{wd}
v_min_u32 v46, s3, v45
v_and_b32 v47, 0xffff, v{tab}
v_lshrrev_b32 v48, 1, v{t}
v_mul_u32_u24 v48, 640, v48
v_add3_u32 v47, v47, v48, v44
v_lshlrev_b32 v43, 5, v47
v_lshlrev_b32 v47, 4, v47'''.format(RS=RS,t=vTid,i0=sI0,tab=vTab,wd=sWd))
    for j in range(J):
        a('v_cmp_lt_u32 %s, v44, v46\nv_add_u32 v44, 2, v44',sr(sEX+2*j,2))
    for j in range(J):
        a('s_mov_b64 exec, %s\ns_cbranch_execz B_ld_done\nbuffer_load_dwordx4 %s, v47, %s, s%d offen offset:%d',sr(sEX+2*j,2),vr(4*j,4),sr(sWS,4),sREC,2*RS*j)
    a('B_ld_done:\ns_mov_b64 exec, -1')
    a('''v_lshlrev_b32 v49, 4, v{t}
v_add_u32 v50, {DA}, v49
v_mov_b32 v52, 0
v_mov_b32 v53, 0
v_mov_b32 v54, 0
v_mov_b32 v55, 0x7fff0000
v_mov_b32 v56, 0
v_mov_b32 v57, 0
v_mov_b32 v58, 0
v_mov_b32 v59, 0
v_cmp_gt_u32 vcc, {n3}, v{t}
ds_write_b128 v50, v[52:55]
ds_write_b128 v50, v[56:59] offset:{dYA}
s_mov_b64 exec, vcc
ds_write_b128 v50, v[52:55] offset:8192
ds_write_b128 v50, v[56:59] offset:{dYA2}
s_mov_b64 exec, -1
v_lshlrev_b32 v58, 2, v{L}
v_add_u32 v58, {CNT}, v58
s_cmp_lg_u32 s{w}, 0
s_cbranch_scc1 B_i1
v_sub_u32 v59, 63, v{L}
ds_write_b32 v58, v59
ds_write_b32 v58, v52 offset:256
v_cmp_eq_u32 vcc, 12, v{L}
v_mov_b32 v59, -1
v_mov_b32 v60, 0x1000
v_cndmask_b32 v59, v59, v60, vcc
v_cmp_gt_u32 vcc, 4, v{L}
s_mov_b64 exec, 0xffff
s_nop 0
v_cndmask_b32 v59, v59, v52, vcc
ds_write_b32 v58, v59 offset:1024
s_mov_b64 exec, -1
B_i1:
s_waitcnt lgkmcnt(0)
s_barrier
v_mov_b32 v59, {MAX}
ds_max_u32 v59, v45
v_mov_b32 v60, 64
s_waitcnt vmcnt(0)'''.format(t=vTid,DA=L_DA,n3=STEPCAP*2-512,dYA=L_YA-L_DA,dYA2=L_YA-L_DA+8192,L=vLane,CNT=L_CNT,w=sWave,MAX=L_MAX))
    stamp(a,opt,2)
    if opt.get('pf',0)&2: pf(opt['pf']&1,120)
    if opt.get('pf',0)&4: pf2(122)
    if opt.get('tlb'):
        a('v_mul_u32_u24 v120, %d, v%d\nglobal_load_dword v%d, v120, s[4:5]',{1:20000,2:160000}[opt['tlb']],vTid if opt['tlb']==1 else vLane,vJunk)
    a('s_mov_b32 s3, %d',L_CNT)
    for j in range(J):
        a('s_mov_b64 exec, %s\ns_cbranch_execz B_c_done\nv_bfe_u32 v%d, v%d, 16, 6\nv_lshl_add_u32 v%d, v%d, 2, s3\nds_add_rtn_u32 v%d, v%d, v60',
          sr(sEX+2*j,2),36+j,4*j+3,36+j,36+j,28+j,36+j)
        m=4*j; c=88+4*j
        a('v_and_b32 v%d, 0xffff0000, v%d\nv_and_b32 v%d, 0xffff0000, v%d\nv_and_b32 v%d, 0xffff0000, v%d\nv_and_b32 v%d, 0xffff, v%d\nv_min_u32 v%d, 9999, v%d\nv_lshlrev_b32 v%d, 10, v%d',
          c,m,c+1,m+1,c+2,m+2,c+3,m+3,c+3,c+3,c+3,c+3)
        if de: a('v_lshrrev_b32 v%d, 22, v%d\nv_add_lshl_u32 v%d, v%d, v48, 5',m+3,m+3,m+3,m+3)
        else: a('v_add_u32 v%d, %d, v43',m+3,64*j)
    a('B_c_done:\ns_mov_b64 exec, -1')
    if not opt.get('noep'):
        a('''v_and_b32 v142, 1, v{t}
v_add_u32 v143, -2, v45
v_mul_i32_i24 v142, v142, v143
v_lshl_add_u32 v142, v142, 5, v43
s_mov_b64 exec, {ex}
s_cbranch_execz B_noep
buffer_load_dword v{j}, v142, {ws}, s{ea} offen
B_noep:
s_mov_b64 exec, -1'''.format(t=vTid,ex=sr(sEX,2),j=vJunk,ws=sr(sWS,4),ea=sEAO))
    a('''s_mov_b32 s3, {WR}
buffer_load_dwordx4 v[128:131], v49, {ws}, s3 offen
s_add_u32 s3, s3, 8192
buffer_load_dwordx4 v[132:135], v49, {ws}, s3 offen
s_add_u32 s3, s3, 8192
v_lshlrev_b32 v140, 3, v{t}
buffer_load_dwordx2 v[136:137], v140, {ws}, s3 offen'''.format(WR=WR,ws=sr(sWS,4),t=vTid))
    a('''s_waitcnt lgkmcnt(0)
s_barrier''')
    stamp(a,opt,5,1)
    a('''ds_read_b32 v61, v58
ds_read_b32 v62, v59
s_mul_i32 s3, s{w}, 5
v_mov_b32 v63, 0
s_waitcnt lgkmcnt(0)
v_readfirstlane_b32 s{mx}, v62'''.format(w=sWave,mx=sMax))
    for i in range(5):
        a('v_readlane_b32 s%d, v61, s3\ns_add_u32 s3, s3, 1\ns_nop 0\nv_cmp_gt_u32 vcc, s%d, v61\ns_nop 1\nv_addc_co_u32 v63, vcc, 0, v63, vcc',sT,sT)
    a('''ds_add_u32 v58, v63 offset:256
s_waitcnt lgkmcnt(0)
s_barrier''')
    stamp(a,opt,6,1)
    a('''v_cmp_gt_u32 vcc, 40, v{L}
ds_read_b32 v63, v58 offset:256
s_waitcnt lgkmcnt(0)
v_cndmask_b32 v63, v{L}, v63, vcc
v_lshlrev_b32 v63, 2, v63
ds_permute_b32 v64, v63, v61
v_and_b32 v65, 1, v{L}
v_cmp_eq_u32 vcc, 0, v65
s_waitcnt lgkmcnt(0)
v_lshrrev_b32 v66, 6, v64
v_and_b32 v64, 63, v64
v_sub_u32 v64, 63, v64
v_mov_b32_dpp v67, v66 quad_perm:[0,0,2,2] row_mask:0xf bank_mask:0xf
v_cndmask_b32 v68, 0, v66, vcc'''.format(L=vLane))
    scan(a,68)
    a('''v_sub_u32 v69, v68, v67
v_readlane_b32 s3, v68, 63
v_lshl_add_u32 v69, v69, 1, v65
v_lshlrev_b32 v70, 2, v64
v_add_u32 v70, {NB}, v70
ds_write_b32 v70, v69
v_cmp_eq_u32 vcc, 0, v67
v_mul_u32_u24 v64, {PROW}, v64
v_mov_b32 v70, 0x100000
s_add_u32 s3, s3, 7
s_lshr_b32 s3, s3, 3
v_cndmask_b32 v64, v64, v70, vcc
v_cndmask_b32 v{pend}, v68, v70, vcc
ds_write_b32 v58, v64 offset:768
s_max_u32 s{Ls}, s3, 16
s_cmp_le_u32 s{Ls}, {cap}
s_cbranch_scc1 B_fit
s_cmp_gt_u32 s{wd}, 2
s_cselect_b32 s{wd}, 2, 1
s_waitcnt lgkmcnt(0)
s_barrier
s_branch B_round
B_fit:
v_cvt_f32_u32 v71, s{Ls}
v_rcp_f32 v71, v71
s_mov_b32 s{T}, {DA}
v_mul_f32 v72, 0.5, v71'''.format(NB=L_NB,PROW=PROW,pend=vPend,Ls=sL,cap=STEPCAP//8,wd=sWd,T=sT,DA=L_DA))
    a('v_readlane_b32 s3, v67, 38\ns_or_b32 s3, s3, s%d\ns_cbranch_scc1 B_nozero',sI0)
    a('v_mov_b32 v124, 0\nv_mov_b32 v125, 0\nv_mov_b32 v126, 0\nv_mov_b32 v127, 0\nv_lshlrev_b32 v120, 4, v%d\nv_add_u32 v121, 0x10000, v120'%vTid)
    for i in range(13): a('ds_write_b128 v%d, v[124:127] offset:%d',120 if i<8 else 121,(i&7)*8192)
    a('v_cmp_gt_u32 vcc, %d, v249\ns_mov_b64 exec, vcc\nds_write_b128 v121, v[124:127] offset:%d\ns_mov_b64 exec, -1',(L_W-13*8192)//16,5*8192)
    a('B_nozero:')
    stamp(a,opt,7,1)
    for j in range(J):
        a('s_mov_b64 exec, %s\ns_cbranch_execz B_n_done\nds_read_b32 v%d, v%d offset:%d',sr(sEX+2*j,2),36+j,36+j,L_NB-L_CNT)
    a("""B_n_done:
s_mov_b64 exec, -1
s_mul_i32 s{c0}, s{w}, s{L}
s_add_u32 s{en}, s{c0}, s{L}
s_mov_b32 s{cur}, s{c0}
s_cmp_eq_u32 s{i0}, 0
s_cselect_b32 s{thr}, s{en}, 0
s_and_b32 s3, s{L}, 15
s_sub_u32 s{u0}, 16, s3
s_lshr_b32 s{it}, s{L}, 4
s_lshl_b32 s{L32}, s{L}, 5
s_sub_u32 s{bk}, 512, s{L32}
s_mov_b32 s{ph}, 0
s_movk_i32 s{inc}, 512
s_mov_b32 s{wi}, 0
s_mov_b32 s{xa}, 0
v_cmp_ge_u32 vcc, s{c0}, v{pend}
v_lshrrev_b32 v80, 2, v{kh}
v_mov_b32 v{lp}, v{LOFF}
v_mov_b32 v{xo}, v{LOFF}
v_lshlrev_b32 v{wad}, 4, v{lane}
s_bcnt1_i32_b64 s{p2}, vcc
s_mov_b32 s{p20}, s{p2}
v_add_u32 v{wad}, {LW}, v{wad}
s_lshl_b32 s3, s{p2}, 2
s_add_u32 s3, s3, {ROW}
v_add_u32 v{rp}, s3, v80
v_mov_b32 v80, s{L32}
s_waitcnt lgkmcnt(0)""".format(**K))
    for j in range(J):
        a("""s_mov_b64 exec, {ex}
s_cbranch_execz B_s_done
v_lshrrev_b32 v73, 6, v{pos}
v_lshl_add_u32 v73, v73, 1, v{nb}
v_lshrrev_b32 v75, 1, v73
v_cvt_f32_u32 v74, v75
v_fma_f32 v74, v74, v71, v72
v_cvt_u32_f32 v74, v74
v_mad_u32_u24 v74, v74, s{L}, {SH}
v_cmp_lt_u32 vcc, v75, v74
v_lshl_add_u32 v73, v73, 4, s{T}
ds_write_b128 v73, {mv}
v_cndmask_b32 v74, 0, v80, vcc
ds_write_b96 v73, {cv} offset:{ya}
v_add_u32 v74, v74, v73
ds_write_b32 v74, v{c3} offset:{yw}""".format(ex=sr(sEX+2*j,2),pos=28+j,nb=36+j,mv=vr(4*j,4),cv=vr(88+4*j,3),c3=88+4*j+3,ya=L_YA-L_DA,yw=L_YA-L_DA+12-32*SH,L=sL,T=sT,SH=SH))
    a("""B_s_done:
s_mov_b64 exec, -1
s_lshl_b32 s3, s{c0}, 5
s_add_u32 s3, s3, {DA}
v_add_u32 v82, s3, v{kh}
s_lshl_b32 s{T}, s{u0}, 5
s_sub_u32 s3, s3, s{T}
s_add_u32 s3, s3, 12
v_add_u32 v83, s3, v{pat}
v_add_u32 v{rec}, 512, v83
v_mov_b32 v85, {LC}
v_cmp_eq_u32 vcc, 1, v{dam}
s_cmp_gt_u32 s{u0}, 15
s_cselect_b32 s3, 512, 0
v_cndmask_b32 v85, v85, v82, vcc
s_sub_u32 s3, s3, s{T}
s_add_u32 s3, s3, {dYA}
v_add_u32 v{ya}, s3, v82
s_cmp_gt_u32 s{u0}, 14
s_cselect_b32 s3, 512, 0
s_sub_u32 s3, s3, s{T}
v_mad_i32_i24 v{da}, v{dam}, s3, v85
v_add_u32 v81, s{L32}, v82
s_sub_u32 s3, 0x3e0, s{T}""".format(**K))
    a('v_add_u32 v141, %d, v49\nv_add_u32 v140, %d, v140\ns_waitcnt vmcnt(0)\nds_write_b128 v141, v[128:131]\nds_write_b128 v141, v[132:135] offset:8192\nds_write_b64 v140, v[136:137]',L_W,L_W+16384)
    stamp(a,opt,8,1)
    for r in range(DEP):
        a('s_and_b32 s3, s3, %d\nv_add_u32 v%d, s3, v81\ns_add_u32 s3, s3, 32',32*DEP-32,F0+r)
    a('s_add_u32 s%d, s%d, 1\ns_and_b32 s%d, s%d, %d\ns_waitcnt lgkmcnt(0)\ns_barrier',sInc8,sU0,sInc8,sInc8,DEP-1)
    stamp(a,opt,3)
    e=Asm(); yw=L_YA-L_DA+12-32*SH
    if not opt.get('noprio'): e('s_setprio 3')
    e('ds_read_b32 v%d, v81 offset:%d',F0+8,yw)
    e('ds_read_b32 v86, v83\nds_read_b32 v%d, v%d',vRecA,vREC)
    for r in range(DEP): e('ds_read_b32 v%d, v%d offset:%d',F0+r,F0+r,yw+32)
    e('ds_read_b128 %s, v85\nds_read_b128 %s, v82 offset:%d\ns_waitcnt lgkmcnt(%d)',vr(ACC+8,4),vr(Y0,4),L_YA-L_DA,DEP+2)
    e('v_add_u32 v%d, v%d, v%d\nv_add_u32 v86, v%d, v86\nv_add_u32 v%d, v%d, v%d',F0+8,F0+8,LOFF,vKh16,vRecA,vKh16,vRecA)
    e('s_lshl_b32 s3, s%d, 5\nv_cmp_gt_u32 vcc, s3, v%d\nv_mov_b32 v87, 0x7fff0000\ns_cmp_gt_u32 s%d, 8\nv_cndmask_b32 v86, v86, v87, vcc\ns_cselect_b64 vcc, %s, 0',sU0,vPat,sU0,sr(sMhi,2))
    for l in xloads(ACC+4,F0+8): e(l)
    e('v_cndmask_b32 v86, v86, v%d, vcc',vRecA); e(eald(EA,86))
    e('s_waitcnt lgkmcnt(0)')
    e('s_setprio 1')
    for r in range(DEP): e('v_add_u32 v%d, v%d, v%d',F0+r,F0+r,LOFF)
    for r in range(1,DEP): e('s_cmp_eq_u32 s%d, %d\ns_cbranch_scc1 B_x%d',sInc8,r,r)
    for r in range(DEP):
        e('B_x%d:',r)
        for l in xloads(X0+4*r,F0+r): e(l)
    for r in range(DEP-1):
        e('s_cmp_le_u32 s%d, %d\ns_cbranch_scc1 B_xd',sInc8,r)
        for l in xloads(X0+4*r,F0+r): e(l)
    e('B_xd:')
    e('ds_read_b128 %s, v85 offset:32',vr(D,4))
    for l in perms(ACC+8): e(l)
    for i in range(4): e('v_mov_b32 v%d, v%d',Y0+4+i,Y0+i)
    for l in nextseg(): e(l)
    def cpy(m): return 's_mov_b64 exec, %s\n%s\ns_mov_b64 exec, -1\ns_nop 2'%(sr(m,2),eald(EA,vRecA))
    mF=['v_mfma_f32_32x32x16_bf16 %s, %s, %s, 0'%(vr(F0+16*b,16),vr(COEF,4),vr(ACC+4,4)) for b in range(2)]
    e('s_cmp_gt_u32 s%d, 8\ns_cbranch_scc1 B_entB',sU0)
    eA=Asm()
    for p in range(5): eA(wread(p,1,24*p+4)); eA(wread(p,0,park(p,0)))
    eA('s_waitcnt vmcnt(%d) lgkmcnt(0)'%(4*DEP))
    for p in range(5): eA(mfR(p,1,24*p+4))
    for p in range(5): eA(mfR(p,0,park(p,0)))
    eA(mF[0]); eA(mF[1]); eA(cpy(sMhi)); eA('s_nop 7\ns_cmp_le_u32 s%d, 4\ns_cbranch_scc1 B_go',sU0)
    for p in range(5): eA(wread(p,1,park(p,8)))
    eA('s_branch B_go')
    eB=Asm()
    pk=lambda p: W4 if p==4 else 24*(p+1)+20
    for p in range(5): eB(wread(p,0,24*p+16)); eB(wread(p,1,pk(p)))
    eB('s_waitcnt vmcnt(%d) lgkmcnt(0)'%(4*DEP))
    for p in range(5): eB(mfR(p,0,24*p+16))
    for p in range(5): eB(mfR(p,1,pk(p)))
    eB(mF[0]); eB(mF[1]); eB(cpy(sMlo)); eB('s_nop 7\ns_cmp_le_u32 s%d, 12\ns_cbranch_scc1 B_go',sU0)
    for p in range(5): eB(wread(p,0,park(p,0)))
    for x in (eA,eB): check_seq(e.lines+x.lines+step(0,True),'entry')
    a.lines+=e.lines+eA.lines; a('B_entB:'); a.lines+=eB.lines
    a('B_go:\ns_sub_u32 s3, s%d, 1\ns_and_b32 s3, s3, 7\ns_cmp_lt_u32 s3, %d\ns_cbranch_scc1 B_go1\ns_waitcnt vmcnt(0)\nB_go1:',sU0,9-DEP)
    if not opt.get('noprio'): a('s_cmp_lt_u32 s%d, 4\ns_cbranch_scc1 B_go2\ns_setprio 2\nB_go2:',sWave)
    stamp(a,opt,4)
    for u in range(1,16): a('s_cmp_eq_u32 s%d, %d\ns_cbranch_scc1 B_M%d',sU0,u,u)
    a('s_branch B_M0')
    a('.p2align 6')
    for u in range(16):
        a('B_N%d:',u); a('\n'.join(step(u,False))); a('s_cbranch_scc1 B_FL%d',u)
        check_seq(step((u-1)&15,False)+step(u,False)+step((u+1)&15,False),'N%d'%u)
    a('s_branch B_N0')
    for u in range(16):
        a('B_M%d:',u); a('\n'.join(step(u,True))); a('s_cbranch_scc0 B_N%d',(u+1)&15)
        a('B_FL%d:',u); a('\n'.join(flush(u)))
        if u<15: a('s_cbranch_scc1 B_exit'); a('\n'.join(nextseg()))
    a('s_cbranch_scc0 B_seg0\ns_cmp_eq_u32 s%d, 1\ns_cbranch_scc1 B_exit',sPhase)
    if opt.get('dbg') and not opt.get('fine'): a('s_memrealtime s[80:81]')
    a('\n'.join(restart()))
    a('B_seg0:'); a('\n'.join(nextseg())); a('s_branch B_M0')
    check_seq(step(15,False)+flush(15)+restart()+nextseg()+step(0,True),'restart')
    for b in range(2): a('\n'.join(addold(b)))
    a('B_exit:')
    stamp(a,opt,6)
    a('''s_add_u32 s{i0}, s{i0}, s{wd}
s_cmp_ge_u32 s{i0}, s{mx}
s_cbranch_scc1 B_gemm
s_waitcnt vmcnt(0) lgkmcnt(0)
s_nop 7
s_barrier
s_branch B_round'''.format(i0=sI0,wd=sWd,mx=sMax))
    gemm(a,opt)
    a('B_end:\ns_endpgm')

def gemm(a,opt):
    G=Asm(); OA=80; RB=124; NR=12; GT=172
    G('''B_gemm:
s_waitcnt lgkmcnt(0)
s_mul_i32 s3, s{w}, 20480
s_add_u32 s3, s3, {WF}
v_lshlrev_b32 v{t}, 4, v{L}
s_nop 7'''.format(w=sWave,WF=WF,t=vTmp,L=vLane))
    H0=[s for s in range(20) if not s&2]; H1=[s for s in range(20) if s&2]
    for i in range(1,5): G('s_add_u32 s%d, s3, %d',sEX+i,4096*i)
    PW=dict(zip(H0,list(range(156,184,4))+[240,244,248])); PA=196
    wl=lambda s,d,ad:G('buffer_load_dwordx4 %s, v%d, %s, s%d offen offset:%d',vr(d,4),ad,sr(sWS,4),sEX+s//4,(s&3)*1024)
    G('s_mov_b32 s%d, s3\nv_add_u32 v194, %d, v%d\nv_mov_b32 v195, v%d\ns_cmp_ge_u32 s%d, 4\ns_cbranch_scc1 B_wy',sEX,4*20480,vTmp,vLane,sWave)
    two=opt.get('two')
    if two:
        for s in H0: wl(s,4*s,vTmp); wl(s,PW[s],194)
    G('B_wy:')
    if not two:
        for s in H0: wl(s,4*s,vTmp)
    for s in H1: wl(s,4*s,vTmp)
    G('s_waitcnt vmcnt(%d)',10 if two else 20)
    Pa,Pb0,Pb1,Oa,Ob0,Ob1=ACC,ACC+1,ACC+2,ACC+3,ACC+4,ACC+5
    G('''v_and_b32 v{x}, 15, v{L}
v_lshrrev_b32 v{y}, 4, v{L}
v_mul_u32_u24 v{Pa}, {PROW}, v{x}
v_lshl_add_u32 v{Pa}, v{y}, 4, v{Pa}
s_lshl_b32 s3, s{w}, 5
s_add_u32 s3, s3, {LW}
v_lshl_add_u32 v{z}, v{y}, 3, s3
s_movk_i32 s3, 1040
v_mad_u32_u24 v{Oa}, v{x}, s3, v{z}
v_and_b32 v{x}, 7, v{L}
v_add_u32 v{x}, 32, v{x}
v_mul_u32_u24 v{Pb0}, {PROW}, v{x}
v_lshl_add_u32 v{Pb0}, v{y}, 4, v{Pb0}
v_mad_u32_u24 v{Ob0}, v{x}, s3, v{z}
v_bfe_u32 v{y}, v{L}, 3, 1
v_mul_u32_u24 v{x}, 768, v{y}
v_add_u32 v{Pb1}, v{Pb0}, v{x}
v_lshl_add_u32 v{Ob1}, v{y}, 8, v{Ob0}
s_and_b32 s3, s{w}, 3
v_lshrrev_b32 v{x}, 3, v{L}
v_lshl_add_u32 v{x}, v{x}, 2, s3
v_mul_u32_u24 v{x}, {PROW}, v{x}
v_and_b32 v{y}, 7, v{L}
v_lshl_add_u32 v193, v{y}, 4, v{x}
s_cmp_lt_u32 s{w}, 4
s_cbranch_scc1 B_gw
s_barrier
@HR
s_branch B_g2
B_gw:
s_setprio {gp}
v_and_b32 v{x}, 7, v{L}
v_lshlrev_b32 v{x}, 2, v{x}
v_add_u32 v{x}, {FL}, v{x}
v_mov_b32 v{z}, 128
B_gspin:
ds_read_b32 v{y}, v{x}
s_waitcnt lgkmcnt(0)
v_cmp_gt_i32 vcc, v{z}, v{y}
s_cmp_lg_u64 vcc, 0
s_cbranch_scc1 B_gspin
B_g1:'''.format(x=ACC+6,y=ACC+7,z=ACC+8,L=195,Pa=Pa,Pb0=Pb0,Pb1=Pb1,Oa=Oa,Ob0=Ob0,Ob1=Ob1,PROW=PROW,n0=sN0,T=sT,w=sWave,nn=sNN,FL=L_FLAG,LW=L_W,gp=opt.get('gp',0)))
    i=G.lines.index('    @HR'); G.lines[i:i+1]=['    ds_read_b128 %s, v193 offset:%d'%(vr(OA+4*k,4),256*k) for k in range(11)]+['    s_waitcnt lgkmcnt(4)']
    if not two: G.lines[i:i+13]=['    s_branch B_g1']
    t0=[(0,Pa,0),(1,Pa,16*PROW),(2,Pb0,0)]
    t1=[(3+3*t+j,Pa,16*PROW*t+512+768*j) for t in range(2) for j in range(3)]+[(9,Pb1,512),(10,Pb0,512+1536)]
    ko=lambda s:64*(s if s<8 else s-8)
    def run(ops,extra,vm,NR,two=False):
        rd=lambda i:'ds_read_b128 %s, v%d offset:%d'%(vr(RB+4*(i%NR),4),ops[i][2],ops[i][3])
        q=[]; GS=opt.get('gs',4); assert len(ops)%GS==0
        for i in range(NR-GS): G(rd(i)); q.append(i)
        for i0 in range(0,len(ops),GS):
            for i in range(i0+NR-GS,min(i0+NR,len(ops))): G(rd(i)); q.append(i)
            w='lgkmcnt(%d)'%min(15,len(q)-1-q.index(i0+GS-1))
            vv=[vm[i] for i in range(i0,i0+GS) if i in vm]
            if vv: w='vmcnt(%d) '%min(vv)+w
            G('s_waitcnt '+w)
            for i in range(i0,i0+GS):
                s,ac,ad,off=ops[i]; acc=vr(OA+4*ac,4)
                G('v_mfma_f32_16x16x32_bf16 %s, %s, %s, %s',acc,vr(4*s,4),vr(RB+4*(i%NR),4),'0' if s in(0,8) else acc)
                if two: acc=vr(PA+4*ac,4); G('v_mfma_f32_16x16x32_bf16 %s, %s, %s, %s',acc,vr(PW[s],4),vr(RB+4*(i%NR),4),'0' if s in(0,8) else acc)
                n=0
                while extra and extra[0][0]<=i and n<opt.get('nx',2):
                    l=extra.pop(0)[1]; G(l); n+=1
                    if l.startswith('ds_'): q.append(-1)
    ops=[]; vm={}
    for n,s in enumerate(H0):
        vm[len(ops)]=28-2*n if two else 19-n; ops+=[(s,ac,ad,off+ko(s)) for ac,ad,off in (t0 if s<8 else t1)]
    run(ops,[],vm,8 if two else 12,two)
    if not two: G('s_cmp_ge_u32 s%d, 4\ns_cbranch_scc1 B_g2',sWave)
    else: G('''v_mov_b32 v{z}, 256
ds_write_b32 v{f}, v{z}
B_gspin2:
ds_read_b32 v{y}, v{x}
s_waitcnt lgkmcnt(0)
v_cmp_gt_i32 vcc, v{z}, v{y}
s_and_b32 s3, vcc_lo, 15
s_cbranch_scc1 B_gspin2
s_nop 1'''.format(x=ACC+6,y=ACC+7,z=ACC+8,f=vFlag))
    for k in range(11 if two else 0): G('ds_write_b128 v193, %s offset:%d',vr(PA+4*k,4),256*k)
    stamp(G,opt,7)
    G('s_waitcnt lgkmcnt(0)\ns_barrier\nB_g2:')
    stamp(G,opt,8); stamp(G,opt,5,2)
    st=lambda d,ad,off,so='0':'ds_write_b64 v%d, %s offset:%d'%(ad,vr(d,2),off+(16*1040 if so=='s3' else 0))
    ops=[(s,ac,ad,off+ko(s)) for s in H1[:4] for ac,ad,off in t0]; vm={0:6,12:0}
    ex=[]
    for t in range(3):
        sig=[]
        for c in range(4*t,4*t+4):
            r=OA+c; g=GT+c
            sig+=['v_mul_f32 v%d, 0xbfb8aa3b, v%d'%(g,r),'v_exp_f32 v%d, v%d'%(g,g),'v_add_f32 v%d, 1.0, v%d'%(g,g),'v_rcp_f32 v%d, v%d'%(g,g)]
        r=OA+4*t
        ex+=[(17,sig[4*c+k]) for k in range(4) for c in range(4)]
        ex+=[(17,'v_cvt_pk_bf16_f32 v%d, v%d, v%d'%(r,r,r+1)),(17,'v_cvt_pk_bf16_f32 v%d, v%d, v%d'%(r+1,r+2,r+3)),(17,st(r,Oa if t<2 else Ob0,0,'s3' if t==1 else '0'))]
        for n,(ac,ad,off) in list(enumerate(t1))[3*t:3*t+3]:
            ops+=[(s,ac,ad,off+ko(s)) for s in H1[4:]]
            gt=GT+4*t; r=OA+4*ac; rdy=len(ops)+7
            ex+=[(rdy,'v_mul_f32 v%d, v%d, v%d'%(r+k,r+k,gt+k)) for k in range(4)]
            ex+=[(rdy,'v_cvt_pk_bf16_f32 v%d, v%d, v%d'%(r,r,r+1)),(rdy,'v_cvt_pk_bf16_f32 v%d, v%d, v%d'%(r+1,r+2,r+3))]
            ex.append((rdy,st(r,Oa,256*(1+n%3),'s3' if n>=3 else '0') if n<6 else st(r,Ob1 if n==6 else Ob0,256 if n==6 else 768)))
    ex.sort(key=lambda x:x[0])
    run(ops,ex,vm,12)
    G('s_nop 7')
    for _,l in ex: G(l)
    stamp(G,opt,6,2)
    G('''s_mul_i32 s3, s{w}, 5200
s_add_u32 s3, s3, {LW}
v_add_u32 v0, s3, v{t}
s_mul_i32 s3, s{w}, 5
s_add_u32 s3, s3, s{n0}
s_lshl_b32 s3, s3, 10
s_add_u32 s{T}, s3, 4096
s_add_u32 s{o2}, s{n0}, s{nn}
s_lshl_b32 s{o2}, s{o2}, 10
s_waitcnt lgkmcnt(0)
s_barrier'''.format(w=sWave,LW=L_W,t=vTmp,n0=sN0,nn=sNN,T=sT,o2=sOUT+2))
    stamp(G,opt,7,2)
    for i in range(5): G('ds_read_b128 %s, v0 offset:%d',vr(4+4*i,4),1040*i)
    for i in range(5): G('s_waitcnt lgkmcnt(%d)\nbuffer_store_dwordx4 %s, v%d, %s, s%d offen offset:%d%s',4-i,vr(4+4*i,4),vTmp,sr(sOUT,4),3 if i<4 else sT,(i&3)*1024,{0:'',1:' sc1',2:' nt',3:' sc0 sc1'}[opt.get('of',0)])
    stamp(G,opt,8,2)
    check_seq(G.lines,'gemm')
    a.lines+=G.lines
    if opt.get('dbg'):
        a('s_waitcnt vmcnt(0)'); stamp(a,opt,9)
        a('s_lshl_b32 s3, s2, 3\ns_add_u32 s3, s3, s%d\ns_lshl_b32 s3, s3, 6\ns_add_u32 s3, s3, %d\nv_mov_b32 v20, 0',sWave,STAMP+0x10000)
        for i in range(10): a('v_mov_b32 v%d, s%d',i,70+2*i)
        a('v_mov_b32 v10, s%d\ns_sub_u32 s4, s94, s92\nv_mov_b32 v11, s4\n; clk %d %d',sL,opt.get('c0',4),opt.get('c1',6))
        for i in range(3): a('buffer_store_dwordx4 %s, v20, %s, s3 offen offset:%d',vr(4*i,4),sr(sWS,4),16*i)
```

```python
import sys
from asmlib import *
from kA import *
from kB import *
NAME='gather_scatter__tensor_product_equiv_equiformer__graph'
def desc(n,v,s=102):
    return '''.p2align 6
.amdhsa_kernel %s
  .amdhsa_next_free_vgpr %d
  .amdhsa_next_free_sgpr %d
  .amdhsa_accum_offset %d
  .amdhsa_group_segment_fixed_size 0
  .amdhsa_kernarg_size 96
  .amdhsa_user_sgpr_count 2
  .amdhsa_user_sgpr_kernarg_segment_ptr 1
  .amdhsa_system_sgpr_workgroup_id_x 1
.end_amdhsa_kernel
'''%(n,v,s,v)
def build(opt):
    hdr=''.join(l for l in open('cdna_kernels/%s.s.ref'%NAME) if l.startswith(';') and '@launch' not in l and 'Override' not in l and 'grid=ceil' not in l)
    a=Asm()
    a('.amdgcn_target "amdgcn-amd-amdhsa--gfx950"\n.text')
    genA(a,opt); genB(a,opt,NAME+'_kernel')
    la='; @launch kernel=sort_kernel grid=(250,1,1) block=(640,1,1) lds=35840\n'
    lb='; @launch kernel=%s_kernel grid=(256,1,1) block=(512,1,1) lds=%d\n'%(NAME,L_END)
    le='; @launch kernel=nop_kernel grid=(256,1,1) block=(64,1,1) lds=0\n'
    ex=''
    if opt.get('nop'):
        a('.globl nop_kernel\n.p2align 8\n.type nop_kernel,@function\nnop_kernel:')
        if 'rd' in opt:
            a('''s_cmp_lg_u32 s2, 0
s_cbranch_scc1 N_end
s_load_dwordx2 s[4:5], s[0:1], 88
s_waitcnt lgkmcnt(0)
s_add_u32 s4, s4, %d
s_addc_u32 s5, s5, 0
s_load_dword s6, s[4:5], 0
s_load_dword s7, s[4:5], %d
s_waitcnt lgkmcnt(0)
s_sub_u32 s7, s7, s6
s_add_u32 s7, s7, 10000
s_min_u32 s7, s7, 30000
N_spin:
s_memrealtime s[8:9]
s_waitcnt lgkmcnt(0)
s_sub_u32 s8, s8, s6
s_cmp_lt_u32 s8, s7
s_cbranch_scc1 N_spin
N_end:''',STAMP,(-4*opt['rd']-4) if opt['rd']<0 else 0x10000+4*opt['rd'])
        a('s_endpgm'); ex=desc('nop_kernel',8)
    return (hdr+(le if opt.get('nop')==2 else '')+la*opt.get('na',1)+lb*opt.get('nb',1)+(le if opt.get('nop')==1 else '')
      +a.text()+'.section .rodata,"a"\n'+ex+desc('sort_kernel',56)+desc(NAME+'_kernel',256))
if __name__=='__main__':
    out=sys.argv[1]; opt={}
    for x in sys.argv[2:]:
        k,_,v=x.partition('='); opt[k]=int(v) if v else 1
    t=build(opt)
    if opt.get('strip'):
        L=t.split('\n'); i=L.index('B_N0:'); j=L.index('B_exit:')
        def bad(l):
            l=l.strip(); m=opt['strip']
            return ((m&1 and l.startswith('global_load_dword ')) or (m&2 and l.startswith('ds_read_b128 v[212')) or (m&4 and l.startswith('v_mfma') and 'v[208:211]' in l)
               or (m&8 and l.startswith(('v_fmac','v_mul_f32'))) or (m&16 and l.startswith('v_mfma') and 'v[224:227]' in l) or (m&32 and l.startswith('v_perm')) or (m&64 and l.startswith('buffer_load_dwordx4')))
        t='\n'.join(L[:i]+[l for l in L[i:j] if not bad(l)]+L[j:])
    if opt.get('depth'): t=t.replace('vmcnt(29) l','vmcnt(%d) l'%(4*opt['depth']-4)).replace('vmcnt(28) l','vmcnt(%d) l'%(4*opt['depth']-4))
    if opt.get('xf'):
        import re
        t=re.sub(r'(global_load_dword v\d+, v\d+, s\[4:5\] offset:\d+)',r'\1 '+{1:'sc1',2:'nt',3:'sc0 sc1',4:'sc0'}[opt['xf']],t)
    if opt.get('noea'): t=t.replace('buffer_load_dwordx4 v[16:19], v4, s[16:19], 0 offen\n','buffer_load_dword v16, v2, s[8:11], 0 offen\n').replace('buffer_load_dwordx4 v[20:23], v4, s[16:19], 0 offen offset:16','buffer_load_dword v20, v2, s[8:11], 0 offen').replace('buffer_store_dwordx4 v[16:19], v14, s[20:23], s58 offen','').replace('buffer_store_dwordx4 v[20:23], v14, s[20:23], s59 offen','').replace('s_cmp_ge_u32 s2, 256','s_cmp_ge_u32 s2, 0')
    if opt.get('af'):
        import re
        t=re.sub(r'(buffer_store_dwordx4 v\[\d+:\d+\], v14, s\[20:23\], s\d+ offen)',r'\1 '+{1:'sc1',2:'nt',3:'sc0 sc1'}[opt['af']],t)
    if opt.get('al'):
        i=t.index('A_now:'); import re
        t=re.sub(r'(buffer_load_\w+ v\S+ v[234], s\[\d+:\d+\], 0 offen[^\n]*)',r'\1 nt',t[:i])+t[i:]
    if opt.get('eant'): t=t.replace('s61 offen\n','s61 offen nt\n')
    open(out,'w').write(t)
```

```python
from asmlib import *
TAB=0; WF=0x40000; WR=WF+160*1024; REC=0x80000; EAO=REC+160000*16; WSSZ=REC+160000*48; STAMP=0x900000
def srd(a,d,b,n,stride=0):
    a('s_mov_b32 s%d, s%d',d,b)
    if stride: a('s_and_b32 s%d, s%d, 0xffff\ns_or_b32 s%d, s%d, 0x%x',d+1,b+1,d+1,d+1,stride<<16)
    else: a('s_and_b32 s%d, s%d, 0xffff',d+1,b+1)
    a('s_mov_b32 s%d, %d\ns_mov_b32 s%d, 0x20000',d+2,n,d+3)
def scan(a,v):
    for sh in (1,2,4,8):
        a('s_nop 1\nv_add_u32_dpp v%d, v%d, v%d row_shr:%d row_mask:0xf bank_mask:0xf',v,v,v,sh)
    a('s_nop 1\nv_add_u32_dpp v%d, v%d, v%d row_bcast:15 row_mask:0xa bank_mask:0xf',v,v,v)
    a('s_nop 1\nv_add_u32_dpp v%d, v%d, v%d row_bcast:31 row_mask:0xc bank_mask:0xf',v,v,v)
def genA(a,opt):
    a('''.globl sort_kernel
.p2align 8
.type sort_kernel,@function
sort_kernel:
s_cmp_ge_u32 s2, 250
s_cbranch_scc1 A_end''')
    if opt.get('dbg'): a('s_memrealtime s[70:71]')
    a('''s_load_dwordx16 s[36:51], s[0:1], 0
s_load_dwordx2 s[52:53], s[0:1], 88
s_mul_i32 s3, s2, 640
v_add_u32 v1, s3, v0
v_lshlrev_b32 v2, 2, v1
v_mul_u32_u24 v3, 6, v1
v_lshlrev_b32 v4, 5, v1
v_lshlrev_b32 v5, 2, v0
v_mov_b32 v6, 0
v_lshrrev_b32 v7, 6, v0
ds_write_b32 v5, v6
v_and_b32 v30, 63, v0
v_readfirstlane_b32 s54, v7
s_waitcnt lgkmcnt(0)''')
    srd(a,4,44,640000); a('buffer_load_dword v8, v2, s[4:7], 0 offen')
    srd(a,8,42,640000); a('buffer_load_dword v9, v2, s[8:11], 0 offen')
    srd(a,12,38,960000)
    a('buffer_load_ushort v10, v3, s[12:15], 0 offen\nbuffer_load_ushort v11, v3, s[12:15], 0 offen offset:2\nbuffer_load_ushort v12, v3, s[12:15], 0 offen offset:4')
    de=opt.get('de')
    if not de:
        srd(a,16,40,5120000)
        a('buffer_load_dwordx4 v[16:19], v4, s[16:19], 0 offen\nbuffer_load_dwordx4 v[20:23], v4, s[16:19], 0 offen offset:16')
    srd(a,20,52,WSSZ if not opt.get('dbg') else STAMP+0x100000)
    npre=0
    if opt.get('apf'):
        srd(a,28,36,10240000)
        n,sh={1:(160,8),2:(320,7),3:(160,8),4:(320,7)}[opt['apf']]
        a('s_mul_i32 s55, s2, %d\nv_add_u32 v41, s55, v0\nv_lshlrev_b32 v41, %d, v41\nv_cmp_gt_u32 vcc, %d, v0\nv_mov_b32 v40, 0x7fff0000\ns_nop 0\nv_cndmask_b32 v41, v40, v41, vcc',n,sh,n)
    a('''s_barrier
s_mov_b32 s55, 214749
s_waitcnt vmcnt(%d)
@1
v_mul_u32_u24 v13, s55, v8
v_lshrrev_b32 v13, 23, v13
v_lshlrev_b32 v14, 2, v13
v_mov_b32 v6, 1
ds_add_rtn_u32 v15, v14, v6
s_movk_i32 s55, 625
v_mad_u32_u24 v13, v13, s55, 15
v_lshrrev_b32 v13, 4, v13
v_sub_u32 v13, v8, v13
v_lshl_or_b32 v13, v0, 6, v13''',(4 if de else 6)+npre)
    a('''s_mov_b32 s56, 0
s_cmp_lg_u32 s54, 1
s_cbranch_scc1 A_now
s_cmp_ge_u32 s2, 180
s_cbranch_scc1 A_now
s_mov_b32 s56, 1
s_mov_b32 s27, 0x20000
s_cmp_ge_u32 s2, 160
s_cbranch_scc1 A_rad
s_mul_i32 s57, s2, 205
s_lshr_b32 s57, s57, 12
s_mul_i32 s58, s57, 20
s_sub_u32 s58, s2, s58
s_cmp_lt_u32 s58, 8
s_cselect_b32 s24, s48, s50
s_cselect_b32 s25, s49, s51
s_mov_b32 s26, 0x18000
s_cselect_b32 s26, 0x10000, s26
s_cselect_b32 s59, 0, 8
s_sub_u32 s58, s58, s59
s_and_b32 s25, s25, 0xffff
s_lshl_b32 s58, s58, 13
s_lshl_b32 s57, s57, 5
s_add_u32 s58, s58, s57
v_lshrrev_b32 v31, 4, v30
v_lshlrev_b32 v31, 11, v31
v_and_b32 v32, 15, v30
v_lshl_add_u32 v31, v32, 1, v31
s_movk_i32 s60, 256
s_branch A_wld
A_rad:
s_sub_u32 s57, s2, 160
s_mul_i32 s58, s57, 52
s_lshr_b32 s58, s58, 8
s_mul_i32 s59, s58, 5
s_sub_u32 s57, s57, s59
s_lshl_b32 s57, s57, 8
s_and_b32 s59, s58, 1
s_lshl_b32 s59, s59, 1
s_lshr_b32 s58, s58, 1
s_lshl_b32 s58, s58, 7
s_add_u32 s58, s58, s57
s_add_u32 s58, s58, s59
s_mov_b32 s24, s46
s_and_b32 s25, s47, 0xffff
s_mov_b32 s26, 20480
v_lshrrev_b32 v31, 5, v30
v_mul_u32_u24 v31, 10240, v31
v_and_b32 v32, 31, v30
v_lshl_add_u32 v31, v32, 2, v31
s_movk_i32 s60, 1280
A_wld:''')
    for i in range(8):
        a('buffer_load_ushort v%d, v31, s[24:27], s58 offen\ns_add_u32 s58, s58, s60',48+i)
    a('''A_now:
s_waitcnt lgkmcnt(0)
s_barrier
v_lshlrev_b32 v5, 4, v30
ds_read_b128 v[24:27], v5
s_waitcnt lgkmcnt(0)
v_add_u32 v28, v24, v25
v_add3_u32 v28, v28, v26, v27
v_mov_b32 v29, v28''')
    scan(a,28)
    a('''v_sub_u32 v32, v28, v29
v_add_u32 v33, v32, v24
v_add_u32 v34, v33, v25
v_add_u32 v35, v34, v26
ds_write_b128 v5, v[32:35] offset:4096
ds_read_b32 v14, v14 offset:4096
s_cmp_lg_u32 s54, 0
s_cbranch_scc1 A_notab
v_lshl_or_b32 v24, v24, 16, v32
v_lshl_or_b32 v25, v25, 16, v33
v_lshl_or_b32 v26, v26, 16, v34
v_lshl_or_b32 v27, v27, 16, v35
s_lshl_b32 s57, s2, 5
v_lshrrev_b32 v28, 1, v30
v_and_b32 v29, 1, v30
v_lshlrev_b32 v29, 4, v29
v_lshl_add_u32 v28, v28, 13, v29
buffer_store_dwordx4 v[24:27], v28, s[20:23], s57 offen
A_notab:
@4
s_waitcnt vmcnt(0)
@2
#1
v_xor_b32 v28, 0x8000, v11
v_xor_b32 v29, 0x8000, v12
v_xor_b32 v31, 0x8000, v10
v_lshl_or_b32 v44, v10, 16, v28
v_lshl_or_b32 v45, v11, 16, v29
v_lshl_or_b32 v46, v12, 16, v31
v_lshl_or_b32 v47, v13, 16, v9
s_waitcnt lgkmcnt(0)
''')
    if de: a('''v_add_lshl_u32 v14, v14, v15, 4
ds_write_b128 v14, v[44:47] offset:5120
v_lshlrev_b32 v14, 4, v0
s_mul_i32 s57, s2, 10240
s_add_u32 s57, s57, %d
s_waitcnt lgkmcnt(0)
s_barrier
@3
ds_read_b128 v[44:47], v14 offset:5120
s_waitcnt lgkmcnt(0)
buffer_store_dwordx4 v[44:47], v14, s[20:23], s57 offen''',REC)
    else: a('''v_add_lshl_u32 v14, v14, v15, 4
v_lshlrev_b32 v15, 1, v14
ds_write_b128 v14, v[44:47] offset:5120
ds_write_b128 v15, v[16:19] offset:15360
ds_write_b128 v15, v[20:23] offset:15376
v_lshlrev_b32 v14, 4, v0
s_mul_i32 s57, s2, 10240
s_lshl_b32 s58, s57, 1
s_add_u32 s57, s57, %d
s_add_u32 s58, s58, 3084288
s_add_u32 s59, s58, 10240
s_waitcnt lgkmcnt(0)
s_barrier
@3
ds_read_b128 v[44:47], v14 offset:5120
ds_read_b128 v[16:19], v14 offset:15360
ds_read_b128 v[20:23], v14 offset:25600
s_waitcnt lgkmcnt(2)
buffer_store_dwordx4 v[44:47], v14, s[20:23], s57 offen
s_waitcnt lgkmcnt(1)
buffer_store_dwordx4 v[16:19], v14, s[20:23], s58 offen
s_waitcnt lgkmcnt(0)
buffer_store_dwordx4 v[20:23], v14, s[20:23], s59 offen
''',REC)
    a('''s_cmp_eq_u32 s56, 0
s_cbranch_scc1 A_fin
s_lshl_b32 s57, s2, 10
s_add_u32 s57, s57, %d
v_lshl_or_b32 v36, v49, 16, v48
v_lshl_or_b32 v37, v51, 16, v50
v_lshl_or_b32 v38, v53, 16, v52
v_lshl_or_b32 v39, v55, 16, v54
buffer_store_dwordx4 v[36:39], v5, s[20:23], s57 offen
A_fin:
#3''',WF)
    if opt.get('dbg'):
        a('''s_waitcnt vmcnt(0)
@0
s_waitcnt lgkmcnt(0)
v_mov_b32 v0, s70
v_mov_b32 v1, s72
s_mul_i32 s57, s2, 10
s_add_u32 s57, s57, s54
s_lshl_b32 s57, s57, 3
s_add_u32 s57, s57, %d
v_mov_b32 v2, 0
buffer_store_dwordx2 v[0:1], v2, s[20:23], s57 offen''',STAMP)
    a('A_end:\ns_endpgm')
    a.lines=[('    buffer_load_dword v40, v41, s[28:31], 0 offen' if l.strip()[0]=='#' else l) for l in a.lines if l.strip()[0]!='#' or (opt.get('apf',-1)-int(l.strip()[1])) in (0,1)]
    a.lines=[('    s_memrealtime s[72:73]\n    s_waitcnt lgkmcnt(0)' if l.strip()[0]=='@' else l) for l in a.lines if l.strip()[0]!='@' or (opt.get('dbg') and int(l.strip()[1])==opt.get('ast',0))]
```

```python
from asmlib import *
from kA import *
PROW=2848
L_P=0; L_W=40*PROW; STEPCAP=432
L_DA=L_W+20480; L_YA=L_DA+STEPCAP*32; L_CONST=L_YA+STEPCAP*32
L_CNT=L_CONST+512; L_RANK=L_CNT+256; L_NB=L_RANK+256; L_ROW=L_NB+256; L_MAX=L_ROW+256; L_FLAG=L_MAX+16; L_END=L_FLAG+48
assert L_END<=163840 and L_CONST%16==0
OPT={}
J=7; DEP=4; SH=DEP+1
F0=120; X0=152; ACC=184; IDX=206; LOFF=207; COEF=208; D=212; Y0=216; EA=224; W4=228; SEL=232
vDA=235; vYA=236; vXo=237; vREC=238; vDAm=239; vWad=240; vRecA=241; T0=242; T1=243
vRowP=244; vRow=245; vPend=246; vLaneP=247; vKh16=248; vTid=249; vTab=250; vLane=251; vTmp=252; vFlag=253; vJunk=254; vPat=255
sX=8; sWS=12; sOUT=16; sEX=20
sWave=34; sI0=35; sWd=36; sMax=37; sL=38; sU0=39; sC0=40; sCur=41; sEnd=42; sCnt=43; sP2=44; sP20=45
sPhase=46; sIter=47; sInc=48; sInc8=49; sWinc=50; sXoff=51; sXadd=52; sBack=53; sMhi=54; sMlo=56
sTile=58; sN0=59; sNN=60; sREC=61; sT=62; sThr=63; sRet=66; sFl=68; sPe=69; sEAO=64; sK1=96
def Rr(p,pi,u):
    return 24*p+(((u+8)&15) if pi==0 else (16+u if u<8 else u))
def park(p,u):
    return W4 if p==4 else 24*(p+1)+(0 if u==0 else 8)
def mfR(p,pi,w): d=24*p+8*pi; return 'v_mfma_f32_32x32x16_bf16 %s, %s, %s, 0'%(vr(d,16),vr(EA,4),vr(w,4))
def wread(p,pi,dst): return 'ds_read_b128 %s, v%d offset:%d'%(vr(dst,4),vWad,(pi*5+p)*1024)
def perms(d=D):
    return ['v_perm_b32 v%d, v%d, v%d, v%d'%(COEF+1+j,d+j,d+(j+2)%3,SEL+j) for j in range(3)]
def fmas(u,pi,first):
    fb=F0+16*(u&1)+8*pi; y=Y0+4*(u&1); t=T0+pi
    def op(k,a,b): return ('v_mul_f32' if first else 'v_fmac_f32')+' v%d, v%d, v%d'%(ACC+2*k+pi,a,b)
    o=[op(0,fb,Rr(0,pi,u)),op(1,fb+1,Rr(1,pi,u)),'v_mul_f32 v%d, v%d, v%d'%(t,fb,Rr(2,pi,u))]
    o+=[op(3+3*j,fb+2+j,Rr(3,pi,u)) for j in range(3)]
    o+=[op(2+3*j,t,y+j) for j in range(3)]
    o+=[op(4+3*j,fb+5+j,Rr(4,pi,u)) for j in range(3)]
    return o
def xloads(dst,idx=IDX):
    return ['global_load_dword v%d, v%d, s[4:5] offset:%d'%(dst+j,idx,256*j) for j in range(4)]
def step(u,first):
    o=[]; burst=u in(0,8); pa=1 if u==0 else 0
    f=fmas(u,pa,first)+fmas(u,1-pa,first)
    xr=X0+4*((u+1)&(DEP-1))
    mF='v_mfma_f32_32x32x16_bf16 %s, %s, %s, 0'%(vr(F0+16*((u+1)&1),16),vr(COEF,4),vr(xr,4))
    pre=perms()
    if u==16-SH: pre.append('v_add_u32 v%d, s%d, v%d'%(vXo,sXadd,vXo))
    pre.append('v_add_u32 v%d, v%d, v%d'%(IDX,Y0+4*(u&1)+3,vXo))
    if u==14: pre.append('v_mad_i32_i24 v%d, v%d, s%d, v%d'%(vDA,vDAm,sInc,vDA))
    if u==15: pre.append('v_add_u32 v%d, s%d, v%d'%(vYA,sInc,vYA))
    if u==12: pre.append('v_add_u32 v%d, s%d, v%d'%(vWad,sWinc,vWad))
    tail=['ds_read_b128 %s, v%d offset:%d'%(vr(D,4),vDA,((u+2)&15)*32),
          'ds_read_b128 %s, v%d offset:%d'%(vr(Y0+4*((u+1)&1),4),vYA,((u+1)&15)*32)]
    if (u&7) in (4,5,6):
        nb=8 if u<8 else 0
        for p in {4:(0,1),5:(2,3),6:(4,)}[u&7]: tail.append(wread(p,1 if nb==8 else 0,park(p,nb)))
    tail+=xloads(xr)
    if burst:
        tail+=['s_mov_b64 exec, %s'%sr(sMhi if u==0 else sMlo,2),eald(EA,vRecA),'s_mov_b64 exec, -1']
        o.append('s_waitcnt vmcnt(%d) lgkmcnt(0)'%(4*DEP-4))
        for p in range(5):
            o.append(mfR(p,1-pa,park(p,u)))
            if p==0 and u==0:
                o+=['s_sub_u32 s%d, s%d, 1'%(sIter,sIter),'s_cmp_eq_u32 s%d, 0'%sIter,'s_cselect_b32 s%d, s%d, 512'%(sInc,sBack),
                    's_cselect_b32 s%d, 10240, 0'%sWinc,'s_cselect_b32 s%d, 128, 0'%sXadd,
                    'v_add_u32 v%d, s%d, v%d'%(vREC,sInc,vREC),'ds_read_b32 v%d, v%d'%(vRecA,vREC)]
            if p==2: o+=pre
            else: o+=f[:3]; f=f[3:]
        if u==0: o+=['s_waitcnt lgkmcnt(0)','v_add_u32 v%d, v%d, v%d'%(vRecA,vKh16,vRecA)]
    else:
        o+=f[:4]+['s_waitcnt vmcnt(%d) lgkmcnt(0)'%(4*DEP-4+(1 if (u&7)<=DEP else 0))]+pre+f[4:5]; f=f[5:]
    if OPT.get('late') and u==OPT['late']: tail=tail+['s_cmp_lg_u32 s%d, %d'%(sIter,OPT.get('lit',-1)),'s_cbranch_scc1 1','s_setprio 1']
    o+=[mF]+tail+['s_sub_u32 s%d, s%d, 1'%(sCnt,sCnt)]+f
    return o
def nextseg():
    return ['v_readlane_b32 s%d, v%d, s%d'%(sPe,vPend,sP2),'ds_read_b32 v%d, v%d'%(vRow,vRowP),
            's_min_u32 s%d, s%d, s%d'%(sT,sPe,sEnd),'s_sub_u32 s%d, s%d, s%d'%(sCnt,sT,sCur),
            's_sub_u32 s%d, s%d, 1'%(sCnt,sCnt),'s_mov_b32 s%d, s%d'%(sCur,sT)]
def flush(u,lab=True):
    o=['v_add_u32 v%d, v%d, v%d'%(vTmp,vRow,vLaneP),'s_cmp_lt_u32 s%d, s%d'%(sCur,sThr),'s_cbranch_scc1 B_FP%d'%u,
       's_call_b64 %s, B_add%d'%(sr(sRet,2),u&1),'B_FP%d:'%u]
    for k in range(11):
        o.append('v_cvt_pk_bf16_f32 v%d, v%d, v%d'%(ACC+2*k,ACC+2*k,ACC+2*k+1))
        if k>1 and k%2==0: o.append('ds_write2st64_b32 v%d, v%d, v%d offset0:%d offset1:%d'%(vTmp,ACC+2*k-4,ACC+2*k-2,k-2,k-1))
    o+=['v_add_u32 v%d, 8, v%d'%(vRowP,vRowP),'s_add_u32 s%d, s%d, 2'%(sP2,sP2),
        'ds_write_b32 v%d, v%d offset:2560'%(vTmp,ACC+20),'ds_write_b32 v%d, v%d'%(vFlag,vLaneP),'s_cmp_eq_u32 s%d, s%d'%(sCur,sEnd)]
    return o
def addold(b):
    f=F0+16*b
    o=['B_add%d:'%b,'s_cmp_gt_u32 s%d, s%d'%(sPe,sThr),'s_cbranch_scc0 B_ret%d'%b,'s_lshl_b32 s%d, s%d, 7'%(sFl,sPhase),'s_cmp_eq_u32 s%d, s%d'%(sCur,sEnd),'s_cselect_b32 s%d, s%d, -1'%(sFl,sFl),
       'B_spin%d:'%b,'ds_read_b32 v%d, v%d offset:4'%(f+11,vFlag)]
    o+=['ds_read2st64_b32 %s, v%d offset0:%d offset1:%d'%(vr(f+k,2),vTmp,k,k+1) for k in range(0,10,2)]
    o+=['ds_read_b32 v%d, v%d offset:2560'%(f+10,vTmp),'s_waitcnt lgkmcnt(0)','v_readfirstlane_b32 s%d, v%d'%(sT,f+11),
        's_cmp_lt_i32 s%d, s%d'%(sT,sFl),'s_cbranch_scc1 B_spin%d'%b]
    for k in range(11):
        o+=['v_dot2c_f32_bf16 v%d, s%d, v%d'%(ACC+2*k,sK1,f+k),'v_dot2c_f32_bf16 v%d, s%d, v%d'%(ACC+2*k+1,sK1+1,f+k)]
    o.append('s_nop 1')
    o+=['B_ret%d:'%b,'s_setpc_b64 %s'%sr(sRet,2)]
    return o
def restart():
    o=[wread(p,1,24*p+4) for p in range(5)]
    o+=['s_mov_b32 s%d, 1'%sPhase,'s_mov_b32 s%d, s%d'%(sCur,sC0),'s_sub_u32 s%d, s%d, s%d'%(sT,sP2,sP20),'s_lshl_b32 s%d, s%d, 2'%(sT,sT),
        's_mov_b32 s%d, s%d'%(sP2,sP20),'v_subrev_u32 v%d, s%d, v%d'%(vRowP,sT,vRowP),'v_add_u32 v%d, 128, v%d'%(vLaneP,vLaneP),
        's_lshl_b32 s%d, s%d, 5'%(sT,sEnd),'s_add_u32 s%d, s%d, %d'%(sT,sT,L_YA+12-32*SH),'v_lshl_add_u32 v%d, v%d, 4, s%d'%(T0,vLane,sT),'v_mov_b32 v%d, 0'%T1,
        's_mov_b64 exec, 0x%x'%((1<<(2*SH))-1),'ds_write_b32 v%d, v%d'%(T0,T1),'s_mov_b64 exec, -1',
        's_setprio 1' if not OPT.get('late') else 's_nop 0','s_waitcnt vmcnt(%d) lgkmcnt(0)'%(28 if DEP==8 else 4*DEP)]
    o+=[mfR(p,1,24*p+4) for p in range(5)]
    return o
def stamp(a,opt,i,fine=0):
    if i in (5,6,7,8) and opt.get('fine',0)!=fine: return
    if opt.get('dbg'):
        if i==opt.get('c0',4): a('s_memtime s[92:93]')
        if i==opt.get('c1',6): a('s_memtime s[94:95]')
        a('s_memrealtime s[%d:%d]\ns_waitcnt lgkmcnt(0)',70+2*i,71+2*i)

def eald(d,ad): return 'buffer_load_dwordx4 %s, v%d, %s, %s offen'%((vr(d,4),ad)+((sr(sX,4),'0') if OPT.get('de') else (sr(sWS,4),'s%d'%sEAO)))
K=dict(c0=sC0,w=sWave,L=sL,en=sEnd,cur=sCur,u0=sU0,it=sIter,bk=sBack,ph=sPhase,inc=sInc,wi=sWinc,xo=vXo,xa=sXadd,i0=sI0,thr=sThr,L32=sXoff,
        pend=vPend,kh=vKh16,lp=vLaneP,LOFF=LOFF,wad=vWad,lane=vLane,p2=sP2,p20=sP20,LW=L_W,ROW=L_ROW,rp=vRowP,DA=L_DA,T=sT,
        rec=vREC,LC=L_CONST,dam=vDAm,dYA=L_YA-L_DA,ya=vYA,da=vDA,pat=vPat)
def genB(a,opt,name):
    OPT.clear(); OPT.update(opt); de=opt.get('de'); RS=16
    a('''.globl %s
.p2align 8
.type %s,@function
%s:
s_cmp_ge_u32 s2, 256
s_cbranch_scc1 B_end''',name,name,name)
    stamp(a,opt,0)
    a('''s_load_dwordx2 s[4:5], s[0:1], 0
s_load_dwordx2 s[6:7], s[0:1], 72
s_load_dwordx2 s[64:65], s[0:1], 88
s_load_dwordx2 s[66:67], s[0:1], 16
s_and_b32 s3, s2, 7
s_lshl_b32 s3, s3, 5
s_lshr_b32 s%d, s2, 3
s_add_u32 s%d, s%d, s3''',sTile,sTile,sTile)
    a('''v_mov_b32 v%d, v0
v_and_b32 v%d, 63, v0
v_lshrrev_b32 v1, 6, v0
v_lshrrev_b32 v2, 1, v0
v_readfirstlane_b32 s%d, v1
v_lshlrev_b32 v2, 5, v2
s_lshr_b32 s3, s%d, 3
s_lshl_b32 s3, s3, 11
s_lshr_b32 s62, s2, 3
s_and_b32 s62, s62, 7
s_add_u32 s3, s3, s62
s_lshl_b32 s3, s3, 2
v_lshlrev_b32 v3, 4, v0
v_mov_b32 v%d, 0
v_cmp_gt_u32 vcc, 500, v0
s_mov_b32 s%d, %d
s_waitcnt lgkmcnt(0)''',vTid,vLane,sWave,sTile,vTab,sREC,REC)
    srd(a,sWS,64,WSSZ if not opt.get('dbg') else STAMP+0x100000)
    a('''s_mov_b64 exec, vcc
buffer_load_dword v%d, v2, %s, s3 offen
s_mov_b64 exec, -1
s_mov_b32 s%d, %d''',vTab,sr(sWS,4),sEAO,EAO)
    a('''s_mov_b32 s3, {WR}
buffer_load_dwordx4 v[128:131], v3, {ws}, s3 offen
s_add_u32 s3, s3, 8192
buffer_load_dwordx4 v[132:135], v3, {ws}, s3 offen
s_add_u32 s3, s3, 8192
v_lshlrev_b32 v140, 3, v{t}
buffer_load_dwordx2 v[136:137], v140, {ws}, s3 offen'''.format(WR=WR,ws=sr(sWS,4),t=vTid))
    npf=3
    def pf(rnd,reg):
        a('''s_and_b32 s3, s2, 7
s_mul_i32 s3, s3, 1250
s_lshr_b32 s%d, s2, 3
s_lshl_b32 s%d, s%d, 7
s_add_u32 s3, s3, s%d
s_add_u32 s3, s3, %d
v_lshrrev_b32 v%d, 2, v%d
v_add_u32 v%d, s3, v%d
v_subrev_u32 v%d, 10000, v%d
v_min_u32 v%d, v%d, v%d
v_and_b32 v%d, 3, v%d
v_lshlrev_b32 v%d, 8, v%d
v_lshl_add_u32 v%d, v%d, 10, v%d
global_load_dword v%d, v%d, s[4:5]''',sT,sT,sT,sT,rnd*4096,reg,vTid,reg,reg,reg+1,reg,reg,reg,reg+1,reg+1,vTid,reg+1,reg+1,reg,reg,reg+1,vJunk,reg)
    def pf2(reg):
        a('''s_lshl_b32 s3, s2, 3
s_add_u32 s3, s3, s%d
s_mul_i32 s3, s3, 20
v_add_u32 v%d, s3, v%d
v_min_u32 v%d, 39999, v%d
v_lshlrev_b32 v%d, 8, v%d
s_mov_b64 exec, 0xfffff
global_load_dword v%d, v%d, s[4:5] offset:%d
s_mov_b64 exec, -1''',sWave,reg,vLane,reg,reg,reg,reg,vJunk,reg,0 if opt['pf']&8 else 128)
    if opt.get('pf',0)&1: pf(0,112); npf=4
    srd(a,sOUT,6,10240000); srd(a,sX,66,5120000)
    a('''s_mul_i32 s3, s%d, 625
s_add_u32 s%d, s3, 15
s_lshr_b32 s%d, s%d, 4
s_add_u32 s3, s3, 640
s_lshr_b32 s3, s3, 4
s_sub_u32 s%d, s3, s%d
s_mov_b32 s%d, 0
s_mov_b32 s%d, %d
s_mov_b32 s%d, 0xffff0000
s_mov_b32 s%d, 0xffff0000
s_mov_b32 s%d, 0xffff
s_mov_b32 s%d, 0xffff''',sTile,sN0,sN0,sN0,sNN,sN0,sI0,sWd,2*J,sMhi,sMhi+1,sMlo,sMlo+1)
    a('s_mov_b32 s%d, 0x3f80\ns_mov_b32 s%d, 0x3f800000',sK1,sK1+1)
    a('''v_and_b32 v10, 31, v{L}
v_lshlrev_b32 v{LOFF}, 2, v10
v_lshrrev_b32 v11, 5, v{L}
v_lshlrev_b32 v{kh}, 4, v11
v_bfe_u32 v12, v{L}, 2, 1
v_bfe_u32 v13, v{L}, 3, 1
v_and_b32 v14, 3, v{L}
v_lshl_add_u32 v13, v13, 2, v14
v_bfe_u32 v14, v{L}, 4, 1
v_lshlrev_b32 v14, 4, v14
v_cmp_eq_u32 vcc, v11, v12
v_mov_b32 v15, 8
s_nop 0
v_cndmask_b32 v13, v15, v13, vcc'''.format(L=vLane,LOFF=LOFF,kh=vKh16))
    H,M_,Lo=0x0706,0x0302,0x0504
    for j in range(3):
        tab={1:H,2+j:H,5+(j+1)%3:M_,5+(j+2)%3:Lo}
        a('v_mov_b32 v16, 0')
        for ph,val in tab.items():
            a('v_cmp_eq_u32 vcc, %d, v13\nv_mov_b32 v17, 0x%x\ns_nop 0\nv_cndmask_b32 v16, v16, v17, vcc',ph,val^0x0c0c)
        a('v_lshlrev_b32 v16, v14, v16\nv_xor_b32 v%d, 0x0c0c0c0c, v16',SEL+j)
    a('''v_cmp_eq_u32 vcc, 0, v13
v_mov_b32 v17, 0x3f80
v_lshlrev_b32 v17, v14, v17
v_cndmask_b32 v{C}, 0, v17, vcc
v_subrev_u32 v16, 2, v13
v_cmp_le_u32 vcc, 3, v16
v_mov_b32 v17, 1
v_mov_b32 v16, 0x3f803f80
v_cndmask_b32 v{m}, 0, v17, vcc
v_lshlrev_b32 v18, 2, v0
v_add_u32 v18, {LC}, v18
v_cmp_gt_u32 vcc, 128, v0
s_mov_b64 exec, vcc
s_cbranch_execz B_noc
ds_write_b32 v18, v16
B_noc:
s_mov_b64 exec, -1
v_bfe_u32 v16, v{L}, 3, 2
v_and_b32 v17, 3, v{L}
v_lshl_add_u32 v16, v16, 2, v17
v_xor_b32 v16, 8, v16
v_lshl_add_u32 v16, v16, 1, v12
v_lshlrev_b32 v{pat}, 4, v16
s_lshl_b32 s3, s{w}, 2
s_add_u32 s3, s3, {FL}
v_lshl_add_u32 v{fl}, v{L}, 20, s3
s_waitcnt vmcnt({npf})'''.format(C=COEF,m=vDAm,LC=L_CONST,LW=L_W,w=sWave,L=vLane,pat=vPat,FL=L_FLAG,fl=vFlag,npf=npf))
    a('B_round:')
    stamp(a,opt,1)
    a('''v_and_b32 v44, 1, v{t}
v_add_u32 v44, s{i0}, v44
v_lshrrev_b32 v45, 16, v{tab}
s_add_u32 s3, s{i0}, s{wd}
v_min_u32 v46, s3, v45
v_and_b32 v47, 0xffff, v{tab}
v_lshrrev_b32 v48, 1, v{t}
v_mul_u32_u24 v48, 640, v48
v_add3_u32 v47, v47, v48, v44
v_lshlrev_b32 v43, 5, v47
v_lshlrev_b32 v47, 4, v47'''.format(RS=RS,t=vTid,i0=sI0,tab=vTab,wd=sWd))
    for j in range(J):
        a('v_cmp_lt_u32 %s, v44, v46\nv_add_u32 v44, 2, v44',sr(sEX+2*j,2))
    for j in range(J):
        a('s_mov_b64 exec, %s\ns_cbranch_execz B_ld_done\nbuffer_load_dwordx4 %s, v47, %s, s%d offen offset:%d',sr(sEX+2*j,2),vr(4*j,4),sr(sWS,4),sREC,2*RS*j)
    a('B_ld_done:\ns_mov_b64 exec, -1')
    a('s_cmp_lg_u32 s%d, %d\ns_cbranch_scc1 B_now\ns_cmp_lg_u32 s%d, 0\ns_cbranch_scc1 B_now',sWd,2*J,sI0)
    for k in range(J,-1,-1):
        if k: a('s_cmp_eq_u64 %s, 0\ns_cbranch_scc1 B_wk%d',sr(sEX+2*k-2,2),k)
        a('s_waitcnt vmcnt(%d)',k)
        if k: a('s_branch B_wk0\nB_wk%d:',k)
    a('B_wk0:\nv_lshlrev_b32 v141, 4, v%d\nv_add_u32 v141, %d, v141\nv_add_u32 v140, %d, v140\nds_write_b128 v141, v[128:131]\nds_write_b128 v141, v[132:135] offset:8192\nds_write_b64 v140, v[136:137]\nB_now:',vTid,L_W,L_W+16384)
    if opt.get('pf',0)&12: pf2(122)
    a('''v_lshlrev_b32 v49, 4, v{t}
v_add_u32 v50, {DA}, v49
v_mov_b32 v52, 0
v_mov_b32 v53, 0
v_mov_b32 v54, 0
v_mov_b32 v55, 0x7fff0000
v_mov_b32 v56, 0
v_mov_b32 v57, 0
v_mov_b32 v58, 0
v_mov_b32 v59, 0
v_cmp_gt_u32 vcc, {n3}, v{t}
ds_write_b128 v50, v[52:55]
ds_write_b128 v50, v[56:59] offset:{dYA}
s_mov_b64 exec, vcc
ds_write_b128 v50, v[52:55] offset:8192
ds_write_b128 v50, v[56:59] offset:{dYA2}
s_mov_b64 exec, -1
v_lshlrev_b32 v58, 2, v{L}
v_add_u32 v58, {CNT}, v58
s_cmp_lg_u32 s{w}, 0
s_cbranch_scc1 B_i1
v_sub_u32 v59, 63, v{L}
ds_write_b32 v58, v59
ds_write_b32 v58, v52 offset:256
v_cmp_eq_u32 vcc, 12, v{L}
v_mov_b32 v59, -1
v_mov_b32 v60, 0x1000
v_cndmask_b32 v59, v59, v60, vcc
v_cmp_gt_u32 vcc, 4, v{L}
s_mov_b64 exec, 0xffff
s_nop 0
v_cndmask_b32 v59, v59, v52, vcc
ds_write_b32 v58, v59 offset:1024
s_mov_b64 exec, -1
B_i1:
s_waitcnt lgkmcnt(0)
s_barrier
v_mov_b32 v59, {MAX}
v_cmp_gt_u32 vcc, v45, v46
s_mov_b64 exec, vcc
s_cbranch_execz B_nomax
ds_max_u32 v59, v45
B_nomax:
s_mov_b64 exec, -1
v_mov_b32 v60, 64
s_waitcnt vmcnt({np})'''.format(np=1 if opt.get('pf',0)&12 else 0,t=vTid,DA=L_DA,n3=STEPCAP*2-512,dYA=L_YA-L_DA,dYA2=L_YA-L_DA+8192,L=vLane,CNT=L_CNT,w=sWave,MAX=L_MAX))
    stamp(a,opt,2)
    if opt.get('pf',0)&2: pf(opt['pf']&1,120)
    if opt.get('tlb'):
        a('v_mul_u32_u24 v120, %d, v%d\nglobal_load_dword v%d, v120, s[4:5]',{1:20000,2:160000}[opt['tlb']],vTid if opt['tlb']==1 else vLane,vJunk)
    a('s_mov_b32 s3, %d',L_CNT)
    for j in range(J):
        a('s_mov_b64 exec, %s\ns_cbranch_execz B_c_done\nv_bfe_u32 v%d, v%d, 16, 6\nv_lshl_add_u32 v%d, v%d, 2, s3\nds_add_rtn_u32 v%d, v%d, v60',
          sr(sEX+2*j,2),36+j,4*j+3,36+j,36+j,28+j,36+j)
        m=4*j; c=88+4*j
        a('v_and_b32 v%d, 0xffff0000, v%d\nv_and_b32 v%d, 0xffff0000, v%d\nv_and_b32 v%d, 0xffff0000, v%d\nv_and_b32 v%d, 0xffff, v%d\nv_min_u32 v%d, 9999, v%d\nv_lshlrev_b32 v%d, 10, v%d',
          c,m,c+1,m+1,c+2,m+2,c+3,m+3,c+3,c+3,c+3,c+3)
        if de: a('v_lshrrev_b32 v%d, 22, v%d\nv_add_lshl_u32 v%d, v%d, v48, 5',m+3,m+3,m+3,m+3)
        else: a('v_add_u32 v%d, %d, v43',m+3,64*j)
    a('B_c_done:\ns_mov_b64 exec, -1')
    if not opt.get('noep'):
        a('''v_and_b32 v142, 1, v{t}
v_add_u32 v143, -2, v45
v_mul_i32_i24 v142, v142, v143
v_lshl_add_u32 v142, v142, 5, v43
s_mov_b64 exec, {ex}
s_cbranch_execz B_noep
buffer_load_dword v{j}, v142, {ws}, s{ea} offen
B_noep:
s_mov_b64 exec, -1'''.format(t=vTid,ex=sr(sEX,2),j=vJunk,ws=sr(sWS,4),ea=sEAO))
    a('''s_waitcnt lgkmcnt(0)
s_barrier''')
    stamp(a,opt,5,1)
    a('''ds_read_b32 v61, v58
ds_read_b32 v62, v59
s_mul_i32 s3, s{w}, 5
v_mov_b32 v63, 0
s_waitcnt lgkmcnt(0)
v_readfirstlane_b32 s{mx}, v62'''.format(w=sWave,mx=sMax))
    for i in range(5):
        a('v_readlane_b32 s%d, v61, s3\ns_add_u32 s3, s3, 1\ns_nop 0\nv_cmp_gt_u32 vcc, s%d, v61\ns_nop 1\nv_addc_co_u32 v63, vcc, 0, v63, vcc',sT,sT)
    a('''ds_add_u32 v58, v63 offset:256
s_waitcnt lgkmcnt(0)
s_barrier''')
    stamp(a,opt,6,1)
    a('''v_cmp_gt_u32 vcc, 40, v{L}
ds_read_b32 v63, v58 offset:256
s_waitcnt lgkmcnt(0)
v_cndmask_b32 v63, v{L}, v63, vcc
v_lshlrev_b32 v63, 2, v63
ds_permute_b32 v64, v63, v61
v_and_b32 v65, 1, v{L}
v_cmp_eq_u32 vcc, 0, v65
s_waitcnt lgkmcnt(0)
v_lshrrev_b32 v66, 6, v64
v_and_b32 v64, 63, v64
v_sub_u32 v64, 63, v64
v_mov_b32_dpp v67, v66 quad_perm:[0,0,2,2] row_mask:0xf bank_mask:0xf
v_cndmask_b32 v68, 0, v66, vcc'''.format(L=vLane))
    scan(a,68)
    a('''v_sub_u32 v69, v68, v67
v_readlane_b32 s3, v68, 63
v_lshl_add_u32 v69, v69, 1, v65
v_lshlrev_b32 v70, 2, v64
v_add_u32 v70, {NB}, v70
ds_write_b32 v70, v69
v_cmp_eq_u32 vcc, 0, v67
v_mul_u32_u24 v64, {PROW}, v64
v_mov_b32 v70, 0x100000
s_add_u32 s3, s3, 7
s_lshr_b32 s3, s3, 3
v_cndmask_b32 v64, v64, v70, vcc
v_cndmask_b32 v{pend}, v68, v70, vcc
ds_write_b32 v58, v64 offset:768
s_max_u32 s{Ls}, s3, 16
s_cmp_le_u32 s{Ls}, {cap}
s_cbranch_scc1 B_fit
s_cmp_gt_u32 s{wd}, 2
s_cselect_b32 s{wd}, 2, 1
s_waitcnt lgkmcnt(0)
s_barrier
s_branch B_round
B_fit:
v_cvt_f32_u32 v71, s{Ls}
v_rcp_f32 v71, v71
s_mov_b32 s{T}, {DA}
v_mul_f32 v72, 0.5, v71'''.format(NB=L_NB,PROW=PROW,pend=vPend,Ls=sL,cap=STEPCAP//8,wd=sWd,T=sT,DA=L_DA))
    a('v_readlane_b32 s3, v67, 38\ns_or_b32 s3, s3, s%d\ns_cbranch_scc1 B_nozero',sI0)
    a('v_mov_b32 v124, 0\nv_mov_b32 v125, 0\nv_mov_b32 v126, 0\nv_mov_b32 v127, 0\nv_lshlrev_b32 v120, 4, v%d\nv_add_u32 v121, 0x10000, v120'%vTid)
    for i in range(13): a('ds_write_b128 v%d, v[124:127] offset:%d',120 if i<8 else 121,(i&7)*8192)
    a('v_cmp_gt_u32 vcc, %d, v249\ns_mov_b64 exec, vcc\nds_write_b128 v121, v[124:127] offset:%d\ns_mov_b64 exec, -1',(L_W-13*8192)//16,5*8192)
    a('B_nozero:')
    stamp(a,opt,7,1)
    for j in range(J):
        a('s_mov_b64 exec, %s\ns_cbranch_execz B_n_done\nds_read_b32 v%d, v%d offset:%d',sr(sEX+2*j,2),36+j,36+j,L_NB-L_CNT)
    a("""B_n_done:
s_mov_b64 exec, -1
s_mul_i32 s{c0}, s{w}, s{L}
s_add_u32 s{en}, s{c0}, s{L}
s_mov_b32 s{cur}, s{c0}
s_cmp_eq_u32 s{i0}, 0
s_cselect_b32 s{thr}, s{en}, 0
s_and_b32 s3, s{L}, 15
s_sub_u32 s{u0}, 16, s3
s_lshr_b32 s{it}, s{L}, 4
s_lshl_b32 s{L32}, s{L}, 5
s_sub_u32 s{bk}, 512, s{L32}
s_mov_b32 s{ph}, 0
s_movk_i32 s{inc}, 512
s_mov_b32 s{wi}, 0
s_mov_b32 s{xa}, 0
v_cmp_ge_u32 vcc, s{c0}, v{pend}
v_lshrrev_b32 v80, 2, v{kh}
v_mov_b32 v{lp}, v{LOFF}
v_mov_b32 v{xo}, v{LOFF}
v_lshlrev_b32 v{wad}, 4, v{lane}
s_bcnt1_i32_b64 s{p2}, vcc
s_mov_b32 s{p20}, s{p2}
v_add_u32 v{wad}, {LW}, v{wad}
s_lshl_b32 s3, s{p2}, 2
s_add_u32 s3, s3, {ROW}
v_add_u32 v{rp}, s3, v80
v_mov_b32 v80, s{L32}
s_waitcnt lgkmcnt(0)""".format(**K))
    for j in range(J):
        a("""s_mov_b64 exec, {ex}
s_cbranch_execz B_s_done
v_lshrrev_b32 v73, 6, v{pos}
v_lshl_add_u32 v73, v73, 1, v{nb}
v_lshrrev_b32 v75, 1, v73
v_cvt_f32_u32 v74, v75
v_fma_f32 v74, v74, v71, v72
v_cvt_u32_f32 v74, v74
v_mad_u32_u24 v74, v74, s{L}, {SH}
v_cmp_lt_u32 vcc, v75, v74
v_lshl_add_u32 v73, v73, 4, s{T}
ds_write_b128 v73, {mv}
v_cndmask_b32 v74, 0, v80, vcc
ds_write_b96 v73, {cv} offset:{ya}
v_add_u32 v74, v74, v73
ds_write_b32 v74, v{c3} offset:{yw}""".format(ex=sr(sEX+2*j,2),pos=28+j,nb=36+j,mv=vr(4*j,4),cv=vr(88+4*j,3),c3=88+4*j+3,ya=L_YA-L_DA,yw=L_YA-L_DA+12-32*SH,L=sL,T=sT,SH=SH))
    a("""B_s_done:
s_mov_b64 exec, -1
s_lshl_b32 s3, s{c0}, 5
s_add_u32 s3, s3, {DA}
v_add_u32 v82, s3, v{kh}
s_lshl_b32 s{T}, s{u0}, 5
s_sub_u32 s3, s3, s{T}
s_add_u32 s3, s3, 12
v_add_u32 v83, s3, v{pat}
v_add_u32 v{rec}, 512, v83
v_mov_b32 v85, {LC}
v_cmp_eq_u32 vcc, 1, v{dam}
s_cmp_gt_u32 s{u0}, 15
s_cselect_b32 s3, 512, 0
v_cndmask_b32 v85, v85, v82, vcc
s_sub_u32 s3, s3, s{T}
s_add_u32 s3, s3, {dYA}
v_add_u32 v{ya}, s3, v82
s_cmp_gt_u32 s{u0}, 14
s_cselect_b32 s3, 512, 0
s_sub_u32 s3, s3, s{T}
v_mad_i32_i24 v{da}, v{dam}, s3, v85
v_add_u32 v81, s{L32}, v82
s_sub_u32 s3, 0x3e0, s{T}""".format(**K))
    stamp(a,opt,8,1)
    for r in range(DEP):
        a('s_and_b32 s3, s3, %d\nv_add_u32 v%d, s3, v81\ns_add_u32 s3, s3, 32',32*DEP-32,F0+r)
    a('s_add_u32 s%d, s%d, 1\ns_and_b32 s%d, s%d, %d\ns_waitcnt lgkmcnt(0)\ns_barrier',sInc8,sU0,sInc8,sInc8,DEP-1)
    stamp(a,opt,3)
    e=Asm(); yw=L_YA-L_DA+12-32*SH
    if not opt.get('noprio'): e('s_setprio 3')
    e('ds_read_b32 v%d, v81 offset:%d',F0+8,yw)
    e('ds_read_b32 v86, v83\nds_read_b32 v%d, v%d',vRecA,vREC)
    for r in range(DEP): e('ds_read_b32 v%d, v%d offset:%d',F0+r,F0+r,yw+32)
    e('ds_read_b128 %s, v85\nds_read_b128 %s, v82 offset:%d\ns_waitcnt lgkmcnt(%d)',vr(ACC+8,4),vr(Y0,4),L_YA-L_DA,DEP+2)
    e('v_add_u32 v%d, v%d, v%d\nv_add_u32 v86, v%d, v86\nv_add_u32 v%d, v%d, v%d',F0+8,F0+8,LOFF,vKh16,vRecA,vKh16,vRecA)
    e('s_lshl_b32 s3, s%d, 5\nv_cmp_gt_u32 vcc, s3, v%d\nv_mov_b32 v87, 0x7fff0000\ns_cmp_gt_u32 s%d, 8\nv_cndmask_b32 v86, v86, v87, vcc\ns_cselect_b64 vcc, %s, 0',sU0,vPat,sU0,sr(sMhi,2))
    for l in xloads(ACC+4,F0+8): e(l)
    e('v_cndmask_b32 v86, v86, v%d, vcc',vRecA); e(eald(EA,86))
    e('s_waitcnt lgkmcnt(0)')
    e('s_setprio 1')
    for r in range(DEP): e('v_add_u32 v%d, v%d, v%d',F0+r,F0+r,LOFF)
    for r in range(1,DEP): e('s_cmp_eq_u32 s%d, %d\ns_cbranch_scc1 B_x%d',sInc8,r,r)
    for r in range(DEP):
        e('B_x%d:',r)
        for l in xloads(X0+4*r,F0+r): e(l)
    for r in range(DEP-1):
        e('s_cmp_le_u32 s%d, %d\ns_cbranch_scc1 B_xd',sInc8,r)
        for l in xloads(X0+4*r,F0+r): e(l)
    e('B_xd:')
    e('ds_read_b128 %s, v85 offset:32',vr(D,4))
    for l in perms(ACC+8): e(l)
    for i in range(4): e('v_mov_b32 v%d, v%d',Y0+4+i,Y0+i)
    for l in nextseg(): e(l)
    def cpy(m): return 's_mov_b64 exec, %s\n%s\ns_mov_b64 exec, -1\ns_nop 2'%(sr(m,2),eald(EA,vRecA))
    mF=['v_mfma_f32_32x32x16_bf16 %s, %s, %s, 0'%(vr(F0+16*b,16),vr(COEF,4),vr(ACC+4,4)) for b in range(2)]
    e('s_cmp_gt_u32 s%d, 8\ns_cbranch_scc1 B_entB',sU0)
    eA=Asm()
    for p in range(5): eA(wread(p,1,24*p+4)); eA(wread(p,0,park(p,0)))
    eA('s_waitcnt vmcnt(%d) lgkmcnt(0)'%(4*DEP))
    for p in range(5): eA(mfR(p,1,24*p+4))
    for p in range(5): eA(mfR(p,0,park(p,0)))
    eA(mF[0]); eA(mF[1]); eA(cpy(sMhi)); eA('s_nop 7\ns_cmp_le_u32 s%d, 4\ns_cbranch_scc1 B_go',sU0)
    for p in range(5): eA(wread(p,1,park(p,8)))
    eA('s_branch B_go')
    eB=Asm()
    pk=lambda p: W4 if p==4 else 24*(p+1)+20
    for p in range(5): eB(wread(p,0,24*p+16)); eB(wread(p,1,pk(p)))
    eB('s_waitcnt vmcnt(%d) lgkmcnt(0)'%(4*DEP))
    for p in range(5): eB(mfR(p,0,24*p+16))
    for p in range(5): eB(mfR(p,1,pk(p)))
    eB(mF[0]); eB(mF[1]); eB(cpy(sMlo)); eB('s_nop 7\ns_cmp_le_u32 s%d, 12\ns_cbranch_scc1 B_go',sU0)
    for p in range(5): eB(wread(p,0,park(p,0)))
    for x in (eA,eB): check_seq(e.lines+x.lines+step(0,True),'entry')
    a.lines+=e.lines+eA.lines; a('B_entB:'); a.lines+=eB.lines
    a('B_go:\ns_sub_u32 s3, s%d, 1\ns_and_b32 s3, s3, 7\ns_cmp_lt_u32 s3, %d\ns_cbranch_scc1 B_go1\ns_waitcnt vmcnt(0)\nB_go1:',sU0,9-DEP)
    if not opt.get('noprio'): a('s_cmp_lt_u32 s%d, 4\ns_cbranch_scc1 B_go2\ns_setprio 2\nB_go2:',sWave)
    stamp(a,opt,4)
    for u in range(1,16): a('s_cmp_eq_u32 s%d, %d\ns_cbranch_scc1 B_M%d',sU0,u,u)
    a('s_branch B_M0')
    a('.p2align 6')
    for u in range(16):
        a('B_N%d:',u); a('\n'.join(step(u,False))); a('s_cbranch_scc1 B_FL%d',u)
        check_seq(step((u-1)&15,False)+step(u,False)+step((u+1)&15,False),'N%d'%u)
    a('s_branch B_N0')
    for u in range(16):
        a('B_M%d:',u); a('\n'.join(step(u,True))); a('s_cbranch_scc0 B_N%d',(u+1)&15)
        a('B_FL%d:',u); a('\n'.join(flush(u)))
        if u<15: a('s_cbranch_scc1 B_exit'); a('\n'.join(nextseg()))
    a('s_cbranch_scc0 B_seg0\ns_cmp_eq_u32 s%d, 1\ns_cbranch_scc1 B_exit',sPhase)
    if opt.get('dbg') and not opt.get('fine'): a('s_memrealtime s[80:81]')
    a('\n'.join(restart()))
    a('B_seg0:'); a('\n'.join(nextseg())); a('s_branch B_M0')
    check_seq(step(15,False)+flush(15)+restart()+nextseg()+step(0,True),'restart')
    for b in range(2): a('\n'.join(addold(b)))
    a('B_exit:')
    stamp(a,opt,6)
    a('''s_add_u32 s{i0}, s{i0}, s{wd}
s_cmp_ge_u32 s{i0}, s{mx}
s_cbranch_scc1 B_gemm
s_waitcnt vmcnt(0) lgkmcnt(0)
s_nop 7
s_barrier
s_branch B_round'''.format(i0=sI0,wd=sWd,mx=sMax))
    gemm(a,opt)
    a('B_end:\ns_endpgm')

def gemm(a,opt):
    G=Asm(); OA=80; RB=124; NR=12; GT=172
    G('''B_gemm:
s_waitcnt lgkmcnt(0)
s_mul_i32 s3, s{w}, 20480
s_add_u32 s3, s3, {WF}
v_lshlrev_b32 v{t}, 4, v{L}
s_nop 7'''.format(w=sWave,WF=WF,t=vTmp,L=vLane))
    H0=[s for s in range(20) if not s&2]; H1=[s for s in range(20) if s&2]
    for i in range(1,5): G('s_add_u32 s%d, s3, %d',sEX+i,4096*i)
    PW=dict(zip(H0,list(range(156,184,4))+[240,244,248])); PA=196
    wl=lambda s,d,ad:G('buffer_load_dwordx4 %s, v%d, %s, s%d offen offset:%d',vr(d,4),ad,sr(sWS,4),sEX+s//4,(s&3)*1024)
    G('s_mov_b32 s%d, s3\nv_add_u32 v194, %d, v%d\nv_mov_b32 v195, v%d\ns_cmp_ge_u32 s%d, 4\ns_cbranch_scc1 B_wy',sEX,4*20480,vTmp,vLane,sWave)
    two=opt.get('two')
    if two:
        for s in H0: wl(s,4*s,vTmp); wl(s,PW[s],194)
    G('B_wy:')
    if not two:
        for s in H0: wl(s,4*s,vTmp)
    for s in H1: wl(s,4*s,vTmp)
    G('s_waitcnt vmcnt(%d)',10 if two else 20)
    Pa,Pb0,Pb1,Oa,Ob0,Ob1=ACC,ACC+1,ACC+2,ACC+3,ACC+4,ACC+5
    G('''v_and_b32 v{x}, 15, v{L}
v_lshrrev_b32 v{y}, 4, v{L}
v_mul_u32_u24 v{Pa}, {PROW}, v{x}
v_lshl_add_u32 v{Pa}, v{y}, 4, v{Pa}
s_lshl_b32 s3, s{w}, 5
s_add_u32 s3, s3, {LW}
v_lshl_add_u32 v{z}, v{y}, 3, s3
s_movk_i32 s3, 1040
v_mad_u32_u24 v{Oa}, v{x}, s3, v{z}
v_and_b32 v{x}, 7, v{L}
v_add_u32 v{x}, 32, v{x}
v_mul_u32_u24 v{Pb0}, {PROW}, v{x}
v_lshl_add_u32 v{Pb0}, v{y}, 4, v{Pb0}
v_mad_u32_u24 v{Ob0}, v{x}, s3, v{z}
v_bfe_u32 v{y}, v{L}, 3, 1
v_mul_u32_u24 v{x}, 768, v{y}
v_add_u32 v{Pb1}, v{Pb0}, v{x}
v_lshl_add_u32 v{Ob1}, v{y}, 8, v{Ob0}
s_and_b32 s3, s{w}, 3
v_lshrrev_b32 v{x}, 3, v{L}
v_lshl_add_u32 v{x}, v{x}, 2, s3
v_mul_u32_u24 v{x}, {PROW}, v{x}
v_and_b32 v{y}, 7, v{L}
v_lshl_add_u32 v193, v{y}, 4, v{x}
s_cmp_lt_u32 s{w}, 4
s_cbranch_scc1 B_gw
s_barrier
@HR
s_branch B_g2
B_gw:
s_setprio {gp}
v_and_b32 v{x}, 7, v{L}
v_lshlrev_b32 v{x}, 2, v{x}
v_add_u32 v{x}, {FL}, v{x}
v_mov_b32 v{z}, 128
B_gspin:
ds_read_b32 v{y}, v{x}
s_waitcnt lgkmcnt(0)
v_cmp_gt_i32 vcc, v{z}, v{y}
s_cmp_lg_u64 vcc, 0
s_cbranch_scc1 B_gspin
B_g1:'''.format(x=ACC+6,y=ACC+7,z=ACC+8,L=195,Pa=Pa,Pb0=Pb0,Pb1=Pb1,Oa=Oa,Ob0=Ob0,Ob1=Ob1,PROW=PROW,n0=sN0,T=sT,w=sWave,nn=sNN,FL=L_FLAG,LW=L_W,gp=opt.get('gp',0)))
    i=G.lines.index('    @HR'); G.lines[i:i+1]=['    ds_read_b128 %s, v193 offset:%d'%(vr(OA+4*k,4),256*k) for k in range(11)]+['    s_waitcnt lgkmcnt(4)']
    if not two: G.lines[i:i+13]=['    s_branch B_g1']
    t0=[(0,Pa,0),(1,Pa,16*PROW),(2,Pb0,0)]
    t1=[(3+3*t+j,Pa,16*PROW*t+512+768*j) for t in range(2) for j in range(3)]+[(9,Pb1,512),(10,Pb0,512+1536)]
    ko=lambda s:64*(s if s<8 else s-8)
    def run(ops,extra,vm,NR,two=False):
        rd=lambda i:'ds_read_b128 %s, v%d offset:%d'%(vr(RB+4*(i%NR),4),ops[i][2],ops[i][3])
        q=[]; GS=opt.get('gs',4); assert len(ops)%GS==0
        for i in range(NR-GS): G(rd(i)); q.append(i)
        for i0 in range(0,len(ops),GS):
            for i in range(i0+NR-GS,min(i0+NR,len(ops))): G(rd(i)); q.append(i)
            w='lgkmcnt(%d)'%min(15,len(q)-1-q.index(i0+GS-1))
            vv=[vm[i] for i in range(i0,i0+GS) if i in vm]
            if vv: w='vmcnt(%d) '%min(vv)+w
            G('s_waitcnt '+w)
            for i in range(i0,i0+GS):
                s,ac,ad,off=ops[i]; acc=vr(OA+4*ac,4)
                G('v_mfma_f32_16x16x32_bf16 %s, %s, %s, %s',acc,vr(4*s,4),vr(RB+4*(i%NR),4),'0' if s in(0,8) else acc)
                if two: acc=vr(PA+4*ac,4); G('v_mfma_f32_16x16x32_bf16 %s, %s, %s, %s',acc,vr(PW[s],4),vr(RB+4*(i%NR),4),'0' if s in(0,8) else acc)
                n=0
                while extra and extra[0][0]<=i and n<opt.get('nx',2):
                    l=extra.pop(0)[1]; G(l); n+=1
                    if l.startswith('ds_'): q.append(-1)
    ops=[]; vm={}
    for n,s in enumerate(H0):
        vm[len(ops)]=28-2*n if two else 19-n; ops+=[(s,ac,ad,off+ko(s)) for ac,ad,off in (t0 if s<8 else t1)]
    run(ops,[],vm,8 if two else 12,two)
    if not two: G('s_cmp_ge_u32 s%d, 4\ns_cbranch_scc1 B_g2',sWave)
    else: G('''v_mov_b32 v{z}, 256
ds_write_b32 v{f}, v{z}
B_gspin2:
ds_read_b32 v{y}, v{x}
s_waitcnt lgkmcnt(0)
v_cmp_gt_i32 vcc, v{z}, v{y}
s_and_b32 s3, vcc_lo, 15
s_cbranch_scc1 B_gspin2
s_nop 1'''.format(x=ACC+6,y=ACC+7,z=ACC+8,f=vFlag))
    for k in range(11 if two else 0): G('ds_write_b128 v193, %s offset:%d',vr(PA+4*k,4),256*k)
    stamp(G,opt,7)
    G('s_waitcnt lgkmcnt(0)\ns_barrier\nB_g2:')
    stamp(G,opt,8); stamp(G,opt,5,2)
    st=lambda d,ad,off,so='0':'ds_write_b64 v%d, %s offset:%d'%(ad,vr(d,2),off+(16*1040 if so=='s3' else 0))
    ops=[(s,ac,ad,off+ko(s)) for s in H1[:4] for ac,ad,off in t0]; vm={0:6,12:0}
    ex=[]
    for t in range(3):
        sig=[]
        for c in range(4*t,4*t+4):
            r=OA+c; g=GT+c
            sig+=['v_mul_f32 v%d, 0xbfb8aa3b, v%d'%(g,r),'v_exp_f32 v%d, v%d'%(g,g),'v_add_f32 v%d, 1.0, v%d'%(g,g),'v_rcp_f32 v%d, v%d'%(g,g)]
        r=OA+4*t
        ex+=[(17,sig[4*c+k]) for k in range(4) for c in range(4)]
        ex+=[(17,'v_cvt_pk_bf16_f32 v%d, v%d, v%d'%(r,r,r+1)),(17,'v_cvt_pk_bf16_f32 v%d, v%d, v%d'%(r+1,r+2,r+3)),(17,st(r,Oa if t<2 else Ob0,0,'s3' if t==1 else '0'))]
        for n,(ac,ad,off) in list(enumerate(t1))[3*t:3*t+3]:
            ops+=[(s,ac,ad,off+ko(s)) for s in H1[4:]]
            gt=GT+4*t; r=OA+4*ac; rdy=len(ops)+7
            ex+=[(rdy,'v_mul_f32 v%d, v%d, v%d'%(r+k,r+k,gt+k)) for k in range(4)]
            ex+=[(rdy,'v_cvt_pk_bf16_f32 v%d, v%d, v%d'%(r,r,r+1)),(rdy,'v_cvt_pk_bf16_f32 v%d, v%d, v%d'%(r+1,r+2,r+3))]
            ex.append((rdy,st(r,Oa,256*(1+n%3),'s3' if n>=3 else '0') if n<6 else st(r,Ob1 if n==6 else Ob0,256 if n==6 else 768)))
    ex.sort(key=lambda x:x[0])
    run(ops,ex,vm,12)
    G('s_nop 7')
    for _,l in ex: G(l)
    stamp(G,opt,6,2)
    G('''s_mul_i32 s3, s{w}, 5200
s_add_u32 s3, s3, {LW}
v_add_u32 v0, s3, v{t}
s_mul_i32 s3, s{w}, 5
s_add_u32 s3, s3, s{n0}
s_lshl_b32 s3, s3, 10
s_add_u32 s{T}, s3, 4096
s_add_u32 s{o2}, s{n0}, s{nn}
s_lshl_b32 s{o2}, s{o2}, 10
s_waitcnt lgkmcnt(0)
s_barrier'''.format(w=sWave,LW=L_W,t=vTmp,n0=sN0,nn=sNN,T=sT,o2=sOUT+2))
    stamp(G,opt,7,2)
    for i in range(5): G('ds_read_b128 %s, v0 offset:%d',vr(4+4*i,4),1040*i)
    for i in range(5): G('s_waitcnt lgkmcnt(%d)\nbuffer_store_dwordx4 %s, v%d, %s, s%d offen offset:%d%s',4-i,vr(4+4*i,4),vTmp,sr(sOUT,4),3 if i<4 else sT,(i&3)*1024,{0:'',1:' sc1',2:' nt',3:' sc0 sc1'}[opt.get('of',0)])
    stamp(G,opt,8,2)
    check_seq(G.lines,'gemm')
    a.lines+=G.lines
    if opt.get('dbg'):
        a('s_waitcnt vmcnt(0)'); stamp(a,opt,9)
        a('s_lshl_b32 s3, s2, 3\ns_add_u32 s3, s3, s%d\ns_lshl_b32 s3, s3, 6\ns_add_u32 s3, s3, %d\nv_mov_b32 v20, 0',sWave,STAMP+0x10000)
        for i in range(10): a('v_mov_b32 v%d, s%d',i,70+2*i)
        a('v_mov_b32 v10, s%d\ns_sub_u32 s4, s94, s92\nv_mov_b32 v11, s4\n; clk %d %d',sL,opt.get('c0',4),opt.get('c1',6))
        for i in range(3): a('buffer_store_dwordx4 %s, v20, %s, s3 offen offset:%d',vr(4*i,4),sr(sWS,4),16*i)
```

```python
from asmlib import *
TAB=0; WF=0x40000; WR=WF+160*1024; REC=0x80000; EAO=REC+160000*16; WSSZ=REC+160000*48; STAMP=0x900000
def srd(a,d,b,n,stride=0):
    a('s_mov_b32 s%d, s%d',d,b)
    if stride: a('s_and_b32 s%d, s%d, 0xffff\ns_or_b32 s%d, s%d, 0x%x',d+1,b+1,d+1,d+1,stride<<16)
    else: a('s_and_b32 s%d, s%d, 0xffff',d+1,b+1)
    a('s_mov_b32 s%d, %d\ns_mov_b32 s%d, 0x20000',d+2,n,d+3)
def scan(a,v,shs=(1,2,4,8)):
    for sh in shs:
        a('s_nop 1\nv_add_u32_dpp v%d, v%d, v%d row_shr:%d row_mask:0xf bank_mask:0xf',v,v,v,sh)
    a('s_nop 1\nv_add_u32_dpp v%d, v%d, v%d row_bcast:15 row_mask:0xa bank_mask:0xf',v,v,v)
    a('s_nop 1\nv_add_u32_dpp v%d, v%d, v%d row_bcast:31 row_mask:0xc bank_mask:0xf',v,v,v)
def genA(a,opt):
    a('''.globl sort_kernel
.p2align 8
.type sort_kernel,@function
sort_kernel:
s_cmp_ge_u32 s2, 250
s_cbranch_scc1 A_end''')
    if opt.get('dbg'): a('s_memrealtime s[70:71]')
    a('''s_load_dwordx16 s[36:51], s[0:1], 0
s_load_dwordx2 s[52:53], s[0:1], 88
s_mul_i32 s3, s2, 640
v_add_u32 v1, s3, v0
v_lshlrev_b32 v2, 2, v1
v_mul_u32_u24 v3, 6, v1
v_lshlrev_b32 v4, 5, v1
v_lshlrev_b32 v5, 2, v0
v_mov_b32 v6, 0
v_lshrrev_b32 v7, 6, v0
ds_write_b32 v5, v6
v_and_b32 v30, 63, v0
v_readfirstlane_b32 s54, v7
s_waitcnt lgkmcnt(0)''')
    srd(a,4,44,640000); a('buffer_load_dword v8, v2, s[4:7], 0 offen')
    srd(a,8,42,640000); a('buffer_load_dword v9, v2, s[8:11], 0 offen')
    srd(a,12,38,960000)
    a('buffer_load_ushort v10, v3, s[12:15], 0 offen\nbuffer_load_ushort v11, v3, s[12:15], 0 offen offset:2\nbuffer_load_ushort v12, v3, s[12:15], 0 offen offset:4')
    de=opt.get('de')
    if not de:
        srd(a,16,40,5120000)
        a('buffer_load_dwordx4 v[16:19], v4, s[16:19], 0 offen\nbuffer_load_dwordx4 v[20:23], v4, s[16:19], 0 offen offset:16')
    srd(a,20,52,WSSZ if not opt.get('dbg') else STAMP+0x100000)
    npre=0
    if opt.get('apf'):
        srd(a,28,36,10240000)
        n,sh={1:(160,8),2:(320,7),3:(160,8),4:(320,7)}[opt['apf']]
        a('s_mul_i32 s55, s2, %d\nv_add_u32 v41, s55, v0\nv_lshlrev_b32 v41, %d, v41\nv_cmp_gt_u32 vcc, %d, v0\nv_mov_b32 v40, 0x7fff0000\ns_nop 0\nv_cndmask_b32 v41, v40, v41, vcc',n,sh,n)
    a('''s_barrier
s_mov_b32 s55, 214749
s_waitcnt vmcnt(%d)
@1
v_mul_u32_u24 v13, s55, v8
v_lshrrev_b32 v13, 23, v13
v_lshlrev_b32 v14, 2, v13
v_mov_b32 v6, 1
ds_add_rtn_u32 v15, v14, v6
s_movk_i32 s55, 625
v_mad_u32_u24 v13, v13, s55, 15
v_lshrrev_b32 v13, 4, v13
v_sub_u32 v13, v8, v13
v_lshl_or_b32 v13, v0, 6, v13''',(4 if de else 6)+npre)
    a('''s_mov_b32 s56, 0
s_cmp_lg_u32 s54, 1
s_cbranch_scc1 A_now
s_cmp_ge_u32 s2, 180
s_cbranch_scc1 A_now
s_mov_b32 s56, 1
s_mov_b32 s61, s2
s_mov_b32 s27, 0x20000
s_cmp_ge_u32 s2, 160
s_cbranch_scc1 A_rad
s_mul_i32 s57, s2, 205
s_lshr_b32 s57, s57, 12
s_mul_i32 s58, s57, 20
s_sub_u32 s58, s2, s58
s_cmp_lt_u32 s58, 8
s_cselect_b32 s24, s48, s50
s_cselect_b32 s25, s49, s51
s_mov_b32 s26, 0x18000
s_cselect_b32 s26, 0x10000, s26
s_cselect_b32 s59, 0, 8
s_sub_u32 s58, s58, s59
s_and_b32 s25, s25, 0xffff
s_lshl_b32 s58, s58, 13
s_lshl_b32 s57, s57, 5
s_add_u32 s58, s58, s57
v_lshrrev_b32 v31, 4, v30
v_lshlrev_b32 v31, 11, v31
v_and_b32 v32, 15, v30
v_lshl_add_u32 v31, v32, 1, v31
s_movk_i32 s60, 256
s_branch A_wld
A_rad:
s_sub_u32 s57, s2, 160
s_mul_i32 s58, s57, 52
s_lshr_b32 s58, s58, 8
s_mul_i32 s59, s58, 5
s_sub_u32 s57, s57, s59
s_mov_b32 s61, 14780448
s_bitcmp1_b32 s58, 0
s_cselect_b32 s61, 17275044, s61
s_mul_i32 s59, s57, 5
s_lshr_b32 s61, s61, s59
s_and_b32 s61, s61, 31
s_cmp_ge_u32 s61, 14
s_cselect_b32 s59, 3, 7
s_bitcmp1_b32 s58, 1
s_cselect_b32 s59, s59, 0
s_add_u32 s61, s61, s59
s_add_u32 s61, s61, 160
s_lshl_b32 s57, s57, 8
s_and_b32 s59, s58, 1
s_lshl_b32 s59, s59, 1
s_lshr_b32 s58, s58, 1
s_lshl_b32 s58, s58, 7
s_add_u32 s58, s58, s57
s_add_u32 s58, s58, s59
s_mov_b32 s24, s46
s_and_b32 s25, s47, 0xffff
s_mov_b32 s26, 20480
v_lshrrev_b32 v31, 5, v30
v_mul_u32_u24 v31, 10240, v31
v_and_b32 v32, 31, v30
v_lshl_add_u32 v31, v32, 2, v31
s_movk_i32 s60, 1280
A_wld:''')
    for i in range(8):
        a('buffer_load_ushort v%d, v31, s[24:27], s58 offen\ns_add_u32 s58, s58, s60',48+i)
    a('''A_now:
s_waitcnt lgkmcnt(0)
s_barrier
v_lshlrev_b32 v5, 4, v30
ds_read_b128 v[24:27], v5
s_waitcnt lgkmcnt(0)
v_add_u32 v28, v24, v25
v_add3_u32 v28, v28, v26, v27
v_mov_b32 v29, v28''')
    scan(a,28)
    a('''v_sub_u32 v32, v28, v29
v_add_u32 v33, v32, v24
v_add_u32 v34, v33, v25
v_add_u32 v35, v34, v26
ds_write_b128 v5, v[32:35] offset:4096
ds_read_b32 v14, v14 offset:4096
s_cmp_lg_u32 s54, 0
s_cbranch_scc1 A_notab
v_lshl_or_b32 v24, v24, 16, v32
v_lshl_or_b32 v25, v25, 16, v33
v_lshl_or_b32 v26, v26, 16, v34
v_lshl_or_b32 v27, v27, 16, v35
s_lshl_b32 s57, s2, 5
v_lshrrev_b32 v28, 1, v30
v_and_b32 v29, 1, v30
v_lshlrev_b32 v29, 4, v29
v_lshl_add_u32 v28, v28, 13, v29
buffer_store_dwordx4 v[24:27], v28, s[20:23], s57 offen
A_notab:
@4
s_waitcnt vmcnt(0)
@2
#1
v_xor_b32 v28, 0x8000, v11
v_xor_b32 v29, 0x8000, v12
v_xor_b32 v31, 0x8000, v10
v_lshl_or_b32 v44, v10, 16, v28
v_lshl_or_b32 v45, v11, 16, v29
v_lshl_or_b32 v46, v12, 16, v31
v_lshl_or_b32 v47, v13, 16, v9
s_waitcnt lgkmcnt(0)
''')
    if de: a('''v_add_lshl_u32 v14, v14, v15, 4
ds_write_b128 v14, v[44:47] offset:5120
v_lshlrev_b32 v14, 4, v0
s_mul_i32 s57, s2, 10240
s_add_u32 s57, s57, %d
s_waitcnt lgkmcnt(0)
s_barrier
@3
ds_read_b128 v[44:47], v14 offset:5120
s_waitcnt lgkmcnt(0)
buffer_store_dwordx4 v[44:47], v14, s[20:23], s57 offen''',REC)
    else: a('''v_add_lshl_u32 v14, v14, v15, 4
v_lshlrev_b32 v15, 1, v14
ds_write_b128 v14, v[44:47] offset:5120
ds_write_b128 v15, v[16:19] offset:15360
ds_write_b128 v15, v[20:23] offset:15376
v_lshlrev_b32 v14, 4, v0
s_mul_i32 s57, s2, 10240
s_lshl_b32 s58, s57, 1
s_add_u32 s57, s57, %d
s_add_u32 s58, s58, 3084288
s_add_u32 s59, s58, 10240
s_waitcnt lgkmcnt(0)
s_barrier
@3
ds_read_b128 v[44:47], v14 offset:5120
ds_read_b128 v[16:19], v14 offset:15360
ds_read_b128 v[20:23], v14 offset:25600
s_waitcnt lgkmcnt(2)
buffer_store_dwordx4 v[44:47], v14, s[20:23], s57 offen
s_waitcnt lgkmcnt(1)
buffer_store_dwordx4 v[16:19], v14, s[20:23], s58 offen
s_waitcnt lgkmcnt(0)
buffer_store_dwordx4 v[20:23], v14, s[20:23], s59 offen
''',REC)
    a('''s_cmp_eq_u32 s56, 0
s_cbranch_scc1 A_fin
s_lshl_b32 s57, s61, 10
s_add_u32 s57, s57, %d
v_lshl_or_b32 v36, v49, 16, v48
v_lshl_or_b32 v37, v51, 16, v50
v_lshl_or_b32 v38, v53, 16, v52
v_lshl_or_b32 v39, v55, 16, v54
buffer_store_dwordx4 v[36:39], v5, s[20:23], s57 offen
A_fin:
#3''',WF)
    if opt.get('dbg'):
        a('''s_waitcnt vmcnt(0)
@0
s_waitcnt lgkmcnt(0)
v_mov_b32 v0, s70
v_mov_b32 v1, s72
s_mul_i32 s57, s2, 10
s_add_u32 s57, s57, s54
s_lshl_b32 s57, s57, 3
s_add_u32 s57, s57, %d
v_mov_b32 v2, 0
buffer_store_dwordx2 v[0:1], v2, s[20:23], s57 offen''',STAMP)
    a('A_end:\ns_endpgm')
    a.lines=[('    buffer_load_dword v40, v41, s[28:31], 0 offen' if l.strip()[0]=='#' else l) for l in a.lines if l.strip()[0]!='#' or (opt.get('apf',-1)-int(l.strip()[1])) in (0,1)]
    a.lines=[('    s_memrealtime s[72:73]\n    s_waitcnt lgkmcnt(0)' if l.strip()[0]=='@' else l) for l in a.lines if l.strip()[0]!='@' or (opt.get('dbg') and int(l.strip()[1])==opt.get('ast',0))]
```

```python
from asmlib import *
from kA import *
PROW=2848
L_P=0; L_W=40*PROW; STEPCAP=376
L_DA=L_W+14336; L_YA=L_DA+STEPCAP*48; L_REC=L_YA+STEPCAP*32; L_CONST=L_REC+STEPCAP*8
L_CNT=L_CONST+768; L_RANK=L_CNT+256; L_NB=L_RANK+256; L_ROW=L_NB+256; L_MAX=L_ROW+256; L_FLAG=L_MAX+16; L_END=L_FLAG+48
assert L_END<=163840 and L_CONST%16==0
OPT={}
import os
J=7; DEP=int(os.environ.get('DEP',4)); SH=DEP+1
F0=120; X0=152; ACC=184; IDX=206; LOFF=207; COEF=208; D=212; Y0=216; EA=224; W4=228; SEL=232
vDA=235; vYA=236; vXo=237; vREC=238; vDAm=239; vWad=240; vRecA=241; T0=242; T1=243
vRowP=244; vRow=245; vPend=246; vLaneP=247; vKh16=248; vTid=249; vTab=250; vLane=251; vTmp=252; vFlag=253; vJunk=254; vPat=255
sX=8; sWS=12; sOUT=16; sEX=20
sWave=34; sI0=35; sWd=36; sMax=37; sL=38; sU0=39; sC0=40; sCur=41; sEnd=42; sCnt=43; sP2=44; sP20=45
sPhase=46; sIter=47; sInc=48; sInc8=49; sWinc=50; sXoff=51; sXadd=52; sBack=53; sMhi=54; sMlo=56
sTile=58; sN0=59; sNN=60; sREC=61; sT=62; sThr=63; sRet=66; sFl=68; sPe=69; sEAO=64; sK1=96
WA={(4,0):168,(3,1):172,(4,1):176}; WB=[180,212,228]; vCB=232; vCBm=233; CR=126; sIncH=98; sSel=99
def Rr(p,pi,u):
    return 24*p+(((u+8)&15) if pi==0 else (16+u if u<8 else u))
def park(p,u):
    return WA.get((p,u//8),24*(p+1)+u)
def mfR(p,pi,w): d=24*p+8*pi; w=WA.get((p,pi),w); return 'v_mfma_f32_32x32x16_bf16 %s, %s, %s, 0'%(vr(d,16),vr(EA,4),vr(w,4))
def wread(p,pi,dst): return '' if (p,pi) in WA else 'ds_read_b128 %s, v%d offset:%d'%(vr(dst,4),vWad,(pi*4+p)*1024)
def trs(off,a=vDA,b=vCB): return ['ds_read_b64_tr_b16 %s, v%d offset:%d'%(vr(COEF,2),a,off),'ds_read_b64_tr_b16 %s, v%d offset:%d'%(vr(COEF+2,2),b,off)]
def swp(): return ['v_swap_b32 v%d, v%d'%(168+4*q+i,WB[q]+i) for q in range(3) for i in range(4)]
def perms(d=D):
    return ['v_perm_b32 v%d, v%d, v%d, v%d'%(COEF+1+j,d+j,d+(j+2)%3,SEL+j) for j in range(3)]
def fmas(u,pi,first):
    fb=F0+16*(u&1)+8*pi; y=Y0+4*(u&1); t=T0+pi
    def op(k,a,b): return ('v_mul_f32' if first else 'v_fmac_f32')+' v%d, v%d, v%d'%(ACC+2*k+pi,a,b)
    o=[op(0,fb,Rr(0,pi,u)),op(1,fb+4,Rr(1,pi,u)),'v_mul_f32 v%d, v%d, v%d'%(t,fb,Rr(2,pi,u))]
    o+=[op(3+3*j,fb+1+j,Rr(3,pi,u)) for j in range(3)]
    o+=[op(2+3*j,t,y+j) for j in range(3)]
    o+=[op(4+3*j,fb+5+j,Rr(4,pi,u)) for j in range(3)]
    return o
def xloads(dst,idx=IDX):
    return ['global_load_dword v%d, v%d, s[4:5] offset:%d'%(dst+j,idx,256*j) for j in range(4)]
def step(u,first):
    o=[]; burst=u in(0,8); pa=1 if u==0 else 0
    f=fmas(u,pa,first)+fmas(u,1-pa,first)
    xr=X0+4*((u+1)&(DEP-1))
    mF='v_mfma_f32_32x32x16_bf16 %s, %s, %s, 0'%(vr(F0+16*((u+1)&1),16),vr(COEF,4),vr(xr,4))
    pre=[]
    if u==16-SH: pre.append('v_add_u32 v%d, s%d, v%d'%(vXo,sXadd,vXo))
    pre.append('v_add_u32 v%d, v%d, v%d'%(IDX,Y0+4*(u&1)+3,vXo))
    if u==14: pre+=['v_mad_i32_i24 v%d, v%d, s%d, v%d'%(x,m,sIncH,x) for x,m in ((vDA,vDAm),(vCB,vCBm))]
    if u==15: pre.append('v_add_u32 v%d, s%d, v%d'%(vYA,sInc,vYA))
    if u==12: pre.append('v_add_u32 v%d, s%d, v%d'%(vWad,sWinc,vWad))
    tail=trs(((u+2)&15)*48)+['ds_read_b128 %s, v%d offset:%d'%(vr(Y0+4*((u+1)&1),4),vYA,((u+1)&15)*32)]
    if (u&7) in (4,5,6):
        nb=8 if u<8 else 0
        for p in {4:(0,1),5:(2,3),6:(4,)}[u&7]: tail.append(wread(p,1 if nb==8 else 0,park(p,nb)))
    tail=[x for x in tail if x]+xloads(xr)
    if burst:
        tail+=['s_mov_b64 exec, %s'%sr(sMhi if u==0 else sMlo,2),eald(EA,vRecA),'s_mov_b64 exec, -1']
        o.append('s_waitcnt vmcnt(%d) lgkmcnt(0)'%(4*DEP-4))
        for p in range(5):
            o.append(mfR(p,1-pa,park(p,u)))
            if p==0 and u==0:
                o+=['s_sub_u32 s%d, s%d, 1'%(sIter,sIter),'s_cmp_eq_u32 s%d, 0'%sIter,'s_cselect_b32 s%d, s%d, 512'%(sInc,sBack),
                    's_cselect_b32 s%d, 7168, 0'%sWinc,'s_cselect_b32 s%d, 128, 0'%sXadd,
                    's_ashr_i32 s%d, s%d, 1'%(sIncH,sInc),'s_ashr_i32 s%d, s%d, 2'%(sT,sInc),'v_add_u32 v%d, s%d, v%d'%(vREC,sT,vREC),'ds_read_b32 v%d, v%d'%(vRecA,vREC)]
            if p==2: o+=pre
            else: o+=f[:3]; f=f[3:]
        if u==0: o+=['s_waitcnt lgkmcnt(0)','v_add_u32 v%d, v%d, v%d'%(vRecA,vKh16,vRecA)]
    else:
        o+=f[:4]+['s_waitcnt vmcnt(%d) lgkmcnt(0)'%(4*DEP-4+(1 if (u&7)<=DEP else 0))]+pre+f[4:5]; f=f[5:]
    if OPT.get('late') and u==OPT['late']: tail=tail+['s_cmp_lg_u32 s%d, %d'%(sIter,OPT.get('lit',-1)),'s_cbranch_scc1 1','s_setprio 1']
    o+=[mF]+tail+['s_sub_u32 s%d, s%d, 1'%(sCnt,sCnt)]+f
    return o
def nextseg():
    return ['ds_read_b32 v%d, v%d'%(vRow,vRowP),'v_readlane_b32 s%d, v%d, s%d'%(sPe,vPend,sP2),'s_not_b32 s%d, s%d'%(sCnt,sCur),
            's_min_u32 s%d, s%d, s%d'%(sCur,sPe,sEnd),'s_add_u32 s%d, s%d, s%d'%(sCnt,sCnt,sCur)]
def flush(u,lab=True):
    o=['v_add_u32 v%d, v%d, v%d'%(vTmp,vRow,vLaneP),'s_cmp_ge_u32 s%d, s%d'%(sCur,sThr),'s_cbranch_scc1 B_FC%d'%u,'B_FP%d:'%u]
    o+=['v_cvt_pk_bf16_f32 v%d, v%d, v%d'%(ACC+2*k,ACC+2*k,ACC+2*k+1) for k in range(11)]
    o+=['v_add_u32 v%d, 8, v%d'%(vRowP,vRowP),'s_add_u32 s%d, s%d, 2'%(sP2,sP2),'s_cmp_eq_u32 s%d, s%d'%(sCur,sEnd)]
    o+=['ds_write2st64_b32 v%d, v%d, v%d offset0:%d offset1:%d'%(vTmp,ACC+2*k,ACC+2*k+2,k,k+1) for k in range(0,10,2)]
    o+=['ds_write_b32 v%d, v%d offset:2560'%(vTmp,ACC+20),'ds_write_b32 v%d, v%d'%(vFlag,vLaneP)]
    return o
def addold(b):
    f=F0+16*b
    o=['B_add%d:'%b,'s_cmp_gt_u32 s%d, s%d'%(sPe,sThr),'s_cbranch_scc0 B_ret%d'%b,'s_lshl_b32 s%d, s%d, 7'%(sFl,sPhase),'s_cmp_eq_u32 s%d, s%d'%(sCur,sEnd),'s_cselect_b32 s%d, s%d, -1'%(sFl,sFl),
       'B_spin%d:'%b,'ds_read_b32 v%d, v%d offset:4'%(f+11,vFlag)]
    o+=['ds_read2st64_b32 %s, v%d offset0:%d offset1:%d'%(vr(f+k,2),vTmp,k,k+1) for k in range(0,10,2)]
    o+=['ds_read_b32 v%d, v%d offset:2560'%(f+10,vTmp),'s_waitcnt lgkmcnt(0)','v_readfirstlane_b32 s%d, v%d'%(sT,f+11),
        's_cmp_lt_i32 s%d, s%d'%(sT,sFl),'s_cbranch_scc1 B_spin%d'%b]
    for k in range(11):
        o+=['v_dot2c_f32_bf16 v%d, s%d, v%d'%(ACC+2*k,sK1,f+k),'v_dot2c_f32_bf16 v%d, s%d, v%d'%(ACC+2*k+1,sK1+1,f+k)]
    o.append('s_nop 1')
    o+=['B_ret%d:'%b,'s_setpc_b64 %s'%sr(sRet,2)]
    return o
def restart():
    o=[wread(p,1,24*p+4) for p in range(3)]+swp()
    o+=['s_mov_b32 s%d, 1'%sPhase,'s_mov_b32 s%d, s%d'%(sCur,sC0),'s_sub_u32 s%d, s%d, s%d'%(sT,sP2,sP20),'s_lshl_b32 s%d, s%d, 2'%(sT,sT),
        's_mov_b32 s%d, s%d'%(sP2,sP20),'v_subrev_u32 v%d, s%d, v%d'%(vRowP,sT,vRowP),'v_add_u32 v%d, 128, v%d'%(vLaneP,vLaneP),
        's_lshl_b32 s%d, s%d, 5'%(sT,sEnd),'s_add_u32 s%d, s%d, %d'%(sT,sT,L_YA+12-32*SH),'v_lshl_add_u32 v%d, v%d, 4, s%d'%(T0,vLane,sT),'v_mov_b32 v%d, 0'%T1,
        's_mov_b64 exec, 0x%x'%((1<<(2*SH))-1),'ds_write_b32 v%d, v%d'%(T0,T1),'s_mov_b64 exec, -1',
        's_setprio 1' if not OPT.get('late') else 's_nop 0','s_waitcnt vmcnt(%d) lgkmcnt(0)'%(28 if DEP==8 else 4*DEP)]
    o+=[mfR(p,1,24*p+4) for p in range(5)]+['s_nop 0']
    return o
def stamp(a,opt,i,fine=0):
    if i in (5,6,7,8) and opt.get('fine',0)!=fine: return
    if opt.get('dbg'):
        if i==opt.get('c0',4): a('s_memtime s[92:93]')
        if i==opt.get('c1',6): a('s_memtime s[94:95]')
        a('s_memrealtime s[%d:%d]\ns_waitcnt lgkmcnt(0)',70+2*i,71+2*i)

def eald(d,ad): return 'buffer_load_dwordx4 %s, v%d, %s, %s offen'%((vr(d,4),ad)+((sr(sX,4),'0') if OPT.get('de') else (sr(sWS,4),'s%d'%sEAO)))
K=dict(c0=sC0,w=sWave,L=sL,en=sEnd,cur=sCur,u0=sU0,it=sIter,bk=sBack,ph=sPhase,inc=sInc,wi=sWinc,xo=vXo,xa=sXadd,i0=sI0,thr=sThr,L32=sXoff,
        pend=vPend,kh=vKh16,lp=vLaneP,LOFF=LOFF,wad=vWad,lane=vLane,p2=sP2,p20=sP20,LW=L_W,ROW=L_ROW,rp=vRowP,DA=L_DA,T=sT,
        rec=vREC,LC=L_CONST,dam=vDAm,dYA=32*SH,ya=vYA,da=vDA,pat=vPat,YS=L_YA-32*SH,RC=L_REC,cb=vCB,cbm=vCBm,t0=T0,t1=T1,ih=sIncH)
def genB(a,opt,name):
    OPT.clear(); OPT.update(opt); de=opt.get('de'); RS=16
    a('''.globl %s
.p2align 8
.type %s,@function
%s:
s_cmp_ge_u32 s2, 256
s_cbranch_scc1 B_end''',name,name,name)
    stamp(a,opt,0)
    a('''s_load_dwordx2 s[4:5], s[0:1], 0
s_load_dwordx2 s[6:7], s[0:1], 72
s_load_dwordx2 s[64:65], s[0:1], 88
s_load_dwordx2 s[66:67], s[0:1], 16
s_and_b32 s3, s2, 7
s_lshl_b32 s3, s3, 5
s_lshr_b32 s%d, s2, 3
s_add_u32 s%d, s%d, s3''',sTile,sTile,sTile)
    a('''v_mov_b32 v%d, v0
v_and_b32 v%d, 63, v0
v_lshrrev_b32 v1, 6, v0
v_lshrrev_b32 v2, 1, v0
v_readfirstlane_b32 s%d, v1
v_lshlrev_b32 v2, 5, v2
s_lshr_b32 s3, s%d, 3
s_lshl_b32 s3, s3, 11
s_lshr_b32 s62, s2, 3
s_and_b32 s62, s62, 7
s_add_u32 s3, s3, s62
s_lshl_b32 s3, s3, 2
v_lshlrev_b32 v3, 4, v0
v_mov_b32 v%d, 0
v_cmp_gt_u32 vcc, 500, v0
s_mov_b32 s%d, %d
s_waitcnt lgkmcnt(0)''',vTid,vLane,sWave,sTile,vTab,sREC,REC)
    srd(a,sWS,64,WSSZ if not opt.get('dbg') else STAMP+0x100000)
    a('''s_mov_b64 exec, vcc
buffer_load_dword v%d, v2, %s, s3 offen
s_mov_b64 exec, -1
s_mov_b32 s%d, %d''',vTab,sr(sWS,4),sEAO,EAO)
    a('''s_mov_b32 s3, {WR}
buffer_load_dwordx4 v[128:131], v3, {ws}, s3 offen
s_add_u32 s3, s3, 8192
buffer_load_dwordx4 v[132:135], v3, {ws}, s3 offen
s_add_u32 s3, s3, 8192
v_lshlrev_b32 v140, 3, v{t}
buffer_load_dwordx2 v[136:137], v140, {ws}, s3 offen'''.format(WR=WR,ws=sr(sWS,4),t=vTid))
    npf=3
    def pf(rnd,reg):
        a('''s_and_b32 s3, s2, 7
s_mul_i32 s3, s3, 1250
s_lshr_b32 s%d, s2, 3
s_lshl_b32 s%d, s%d, 7
s_add_u32 s3, s3, s%d
s_add_u32 s3, s3, %d
v_lshrrev_b32 v%d, 2, v%d
v_add_u32 v%d, s3, v%d
v_subrev_u32 v%d, 10000, v%d
v_min_u32 v%d, v%d, v%d
v_and_b32 v%d, 3, v%d
v_lshlrev_b32 v%d, 8, v%d
v_lshl_add_u32 v%d, v%d, 10, v%d
global_load_dword v%d, v%d, s[4:5]''',sT,sT,sT,sT,rnd*4096,reg,vTid,reg,reg,reg+1,reg,reg,reg,reg+1,reg+1,vTid,reg+1,reg+1,reg,reg,reg+1,vJunk,reg)
    def pf2(reg):
        a('''s_lshl_b32 s3, s2, 3
s_add_u32 s3, s3, s%d
s_mul_i32 s3, s3, 20
v_add_u32 v%d, s3, v%d
v_min_u32 v%d, 39999, v%d
v_lshlrev_b32 v%d, 8, v%d
s_mov_b64 exec, %d
global_load_dword v%d, v%d, s[4:5] offset:%d
s_mov_b64 exec, -1''',sWave,reg,vLane,reg,reg,reg,reg,(1<<opt.get('pn',20))-1,vJunk,reg,0 if opt['pf']&8 else 128)
    if opt.get('pf',0)&1: pf(0,112); npf=4
    srd(a,sOUT,6,10240000); srd(a,sX,66,5120000)
    a('''s_mul_i32 s3, s%d, 625
s_add_u32 s%d, s3, 15
s_lshr_b32 s%d, s%d, 4
s_add_u32 s3, s3, 640
s_lshr_b32 s3, s3, 4
s_sub_u32 s%d, s3, s%d
s_mov_b32 s%d, 0
s_mov_b32 s%d, %d
s_mov_b32 s%d, 0xffff0000
s_mov_b32 s%d, 0xffff0000
s_mov_b32 s%d, 0xffff
s_mov_b32 s%d, 0xffff''',sTile,sN0,sN0,sN0,sNN,sN0,sI0,sWd,2*J,sMhi,sMhi+1,sMlo,sMlo+1)
    a('s_mov_b32 s%d, 0x3f80\ns_mov_b32 s%d, 0x3f800000',sK1,sK1+1)
    a('v_mov_b32 v19, 0xa5\nv_mov_b32 v20, 0x84')
    a('''v_and_b32 v10, 31, v{L}
v_lshlrev_b32 v{LOFF}, 2, v10
v_lshrrev_b32 v11, 5, v{L}
v_lshlrev_b32 v{kh}, 4, v11
v_bfe_u32 v12, v{L}, 2, 1
v_bfe_u32 v13, v{L}, 4, 1
v_xor_b32 v13, v13, v12
v_and_b32 v14, 1, v{L}
v_xor_b32 v14, v14, v11
v_or_b32 v13, v13, v14
v_bfe_u32 v14, v{L}, 1, 1
v_lshl_or_b32 v13, v13, 1, v14
v_bfe_u32 v15, v{L}, 3, 1
v_cmp_eq_u32 vcc, 1, v13
v_mov_b32 v16, 3
v_lshlrev_b32 v17, 3, v15
v_cndmask_b32 v{cbm}, 0, v16, vcc
v_mul_u32_u24 v{m}, v{cbm}, v15
v_cmp_eq_u32 vcc, 0, v13
v_mov_b32 v16, 32
v_add_u32 v14, 16, v17
v_cndmask_b32 v{k1}, v16, v17, vcc
v_cndmask_b32 v14, v16, v14, vcc
v_lshl_or_b32 v{k1}, v14, 8, v{k1}
s_mov_b32 s{sel}, 0x07060302
v_mul_u32_u24 v14, 171, v0
v_lshrrev_b32 v14, 11, v14
v_mul_u32_u24 v14, 12, v14
v_sub_u32 v14, v0, v14
v_lshrrev_b32 v15, v14, v{a5}
v_and_b32 v15, 1, v15
v_mul_u32_u24 v15, 0x3f80, v15
v_lshrrev_b32 v14, v14, v{x84}
v_and_b32 v14, 1, v14
v_lshlrev_b32 v14, 4, v14
v_lshlrev_b32 v16, v14, v15'''.format(L=vLane,LOFF=LOFF,kh=vKh16,cbm=vCBm,m=vDAm,k1=234,sel=sSel,a5=19,x84=20))
    a('''v_lshlrev_b32 v18, 2, v0
v_add_u32 v18, {LC}, v18
v_cmp_gt_u32 vcc, 192, v0
s_mov_b64 exec, vcc
s_cbranch_execz B_noc
ds_write_b32 v18, v16
B_noc:
s_mov_b64 exec, -1
v_bfe_u32 v16, v{L}, 3, 2
v_and_b32 v17, 3, v{L}
v_lshl_add_u32 v16, v16, 2, v17
v_xor_b32 v16, 8, v16
v_lshl_add_u32 v16, v16, 1, v12
v_lshlrev_b32 v{pat}, 2, v16
s_lshl_b32 s3, s{w}, 2
s_add_u32 s3, s3, {FL}
v_lshl_add_u32 v{fl}, v{L}, 20, s3
s_waitcnt vmcnt({npf})'''.format(C=COEF,m=vDAm,LC=L_CONST,LW=L_W,w=sWave,L=vLane,pat=vPat,FL=L_FLAG,fl=vFlag,npf=npf))
    a('B_round:')
    stamp(a,opt,1)
    a('''v_and_b32 v44, 1, v{t}
v_add_u32 v44, s{i0}, v44
v_lshrrev_b32 v45, 16, v{tab}
s_add_u32 s3, s{i0}, s{wd}
v_min_u32 v46, s3, v45
v_and_b32 v47, 0xffff, v{tab}
v_lshrrev_b32 v48, 1, v{t}
v_mul_u32_u24 v48, 640, v48
v_add3_u32 v47, v47, v48, v44
v_lshlrev_b32 v43, 5, v47
v_lshlrev_b32 v47, 4, v47'''.format(RS=RS,t=vTid,i0=sI0,tab=vTab,wd=sWd))
    for j in range(J):
        a('v_cmp_lt_u32 %s, v44, v46\nv_add_u32 v44, 2, v44',sr(sEX+2*j,2))
    for j in range(J):
        a('s_mov_b64 exec, %s\ns_cbranch_execz B_ld_done\nbuffer_load_dwordx4 %s, v47, %s, s%d offen offset:%d',sr(sEX+2*j,2),vr(4*j,4),sr(sWS,4),sREC,2*RS*j)
    a('B_ld_done:\ns_mov_b64 exec, -1')
    a('s_cmp_lg_u32 s%d, %d\ns_cbranch_scc1 B_now\ns_cmp_lg_u32 s%d, 0\ns_cbranch_scc1 B_now',sWd,2*J,sI0)
    for k in range(J,-1,-1):
        if k: a('s_cmp_eq_u64 %s, 0\ns_cbranch_scc1 B_wk%d',sr(sEX+2*k-2,2),k)
        a('s_waitcnt vmcnt(%d)',k)
        if k: a('s_branch B_wk0\nB_wk%d:',k)
    a('B_wk0:\nv_lshlrev_b32 v141, 4, v%d\nv_add_u32 v141, %d, v141\nds_write_b128 v141, v[128:131]\ns_cmp_ge_u32 s%d, 6\ns_movk_i32 s3, 8192\ns_cselect_b32 s3, %d, s3\nv_add_u32 v141, s3, v141\nds_write_b128 v141, v[132:135]\nds_write_b64 v140, v[136:137] offset:2048\nB_now:',vTid,L_W,sWave,-L_W-6144)
    if opt.get('pp')==2: pf2(122)
    a('''v_lshlrev_b32 v49, 4, v{t}
v_add_u32 v50, {DA}, v49
v_mov_b32 v52, 0
v_mov_b32 v53, 0
v_mov_b32 v54, 0
v_mov_b32 v55, 0
v_mov_b32 v56, 0x7fff0000
v_mov_b32 v57, 0x7fff0000
v_lshlrev_b32 v51, 3, v{t}
v_add_u32 v51, {RC}, v51
v_cmp_gt_u32 vcc, {sc}, v{t}
ds_write_b128 v50, v[52:55]
ds_write_b128 v50, v[52:55] offset:8192
ds_write_b128 v50, v[52:55] offset:16384
s_mov_b64 exec, vcc
ds_write_b64 v51, v[56:57]
v_cmp_gt_u32 vcc, {n3}, v{t}
s_mov_b64 exec, vcc
ds_write_b128 v50, v[52:55] offset:24576
s_mov_b64 exec, -1
v_lshlrev_b32 v58, 2, v{L}
v_add_u32 v58, {CNT}, v58
s_cmp_lg_u32 s{w}, 0
s_cbranch_scc1 B_i1
v_sub_u32 v59, 63, v{L}
ds_write_b32 v58, v59
ds_write_b32 v58, v52 offset:256
v_cmp_eq_u32 vcc, 12, v{L}
v_mov_b32 v59, -1
v_mov_b32 v60, 0x1000
v_cndmask_b32 v59, v59, v60, vcc
v_cmp_gt_u32 vcc, 4, v{L}
s_mov_b64 exec, 0xffff
s_nop 0
v_cndmask_b32 v59, v59, v52, vcc
ds_write_b32 v58, v59 offset:1024
s_mov_b64 exec, -1
B_i1:
s_waitcnt lgkmcnt(0)
s_barrier
s_cmp_lg_u32 s{wd}, {J2}
s_cbranch_scc1 B_now2
s_cmp_lg_u32 s{i0}, 0
s_cbranch_scc1 B_now2
v_lshlrev_b32 v59, 4, v{L}
ds_read_b128 v[168:171], v59 offset:0
ds_read_b128 v[172:175], v59 offset:1024
ds_read_b128 v[176:179], v59 offset:2048
ds_read_b128 v[180:183], v59 offset:3072
ds_read_b128 v[212:215], v59 offset:4096
ds_read_b128 v[228:231], v59 offset:5120
B_now2:
v_mov_b32 v59, {MAX}
v_cmp_gt_u32 vcc, v45, v46
s_mov_b64 exec, vcc
s_cbranch_execz B_nomax
ds_max_u32 v59, v45
B_nomax:
s_mov_b64 exec, -1
v_mov_b32 v60, 64
s_waitcnt vmcnt({np})'''.format(np=1 if opt.get('pp')==2 else 0,wd=sWd,J2=2*J,i0=sI0,t=vTid,DA=L_DA,n3=STEPCAP*5-1536,sc=STEPCAP,RC=L_REC,dYA=L_YA-L_DA,dYA2=L_YA-L_DA+8192,L=vLane,CNT=L_CNT,w=sWave,MAX=L_MAX))
    def prej(j0,j1):
        for j in range(j0,j1):
            if j>2: a('s_cmp_eq_u64 %s, 0\ns_cbranch_scc1 B_pj',sr(sEX+2*j,2))
            m=4*j; c=88+4*j
            a('v_and_b32 v%d, 0xffff0000, v%d\nv_and_b32 v%d, 0xffff0000, v%d\nv_and_b32 v%d, 0xffff0000, v%d\nv_and_b32 v%d, 0xffff, v%d\nv_min_u32 v%d, 9999, v%d\nv_lshlrev_b32 v%d, 10, v%d',
              c,m,c+1,m+1,c+2,m+2,c+3,m+3,c+3,c+3,c+3,c+3)
            q=CR+6*j
            a('v_lshrrev_b32 v%d, 16, v%d\nv_alignbit_b32 v%d, v%d, v%d, 16\nv_alignbit_b32 v%d, v%d, v%d, 16\nv_mov_b32 v%d, v%d\nv_perm_b32 v%d, v%d, v%d, s%d\nv_and_b32 v%d, 0xffff, v%d',
              q,m,q+1,m,m+2,q+2,m+1,m+1,q+3,c,q+4,m+1,m+2,sSel,q+5,m+2)
            if de: a('v_lshrrev_b32 v%d, 22, v%d\nv_add_lshl_u32 v%d, v%d, v48, 5',m+3,m+3,m+3,m+3)
            else: a('v_add_u32 v%d, %d, v43',m+3,64*j)
        if j1==J: a('B_pj:')
    stamp(a,opt,2)
    if opt.get('pp')==1: pf2(122)
    if opt.get('pf',0)&2: pf(opt['pf']&1,120)
    if opt.get('tlb'):
        a('v_mul_u32_u24 v120, %d, v%d\nglobal_load_dword v%d, v120, s[4:5]',{1:20000,2:160000}[opt['tlb']],vTid if opt['tlb']==1 else vLane,vJunk)
    a('s_mov_b32 s3, %d',L_CNT)
    for j in range(J):
        a('s_mov_b64 exec, %s\ns_cbranch_execz B_c_done\nv_bfe_u32 v%d, v%d, 16, 6\nv_lshl_add_u32 v%d, v%d, 2, s3\nds_add_rtn_u32 v%d, v%d, v60',
          sr(sEX+2*j,2),36+j,4*j+3,36+j,36+j,28+j,36+j)
    a('B_c_done:\ns_mov_b64 exec, -1')
    if not opt.get('noep'):
        a('''v_and_b32 v124, 1, v{t}
v_add_u32 v125, -2, v45
v_mul_i32_i24 v124, v124, v125
v_lshl_add_u32 v124, v124, 5, v43
s_mov_b64 exec, {ex}
s_cbranch_execz B_noep
buffer_load_dword v{j}, v124, {ws}, s{ea} offen
B_noep:
s_mov_b64 exec, -1'''.format(t=vTid,ex=sr(sEX,2),j=vJunk,ws=sr(sWS,4),ea=sEAO))
    if opt.get('pf',0)&12 and not opt.get('pp'): pf2(122)
    prej(0,1)
    a('''s_waitcnt lgkmcnt(0)
s_barrier''')
    stamp(a,opt,5,1)
    a('''ds_read_b32 v61, v58
ds_read_b32 v62, v59
s_mul_i32 s3, s{w}, 5
v_mov_b32 v63, 0'''.format(w=sWave))
    prej(1,2)
    a('''s_waitcnt lgkmcnt(0)
v_readfirstlane_b32 s{mx}, v62'''.format(w=sWave,mx=sMax))
    for i in range(5):
        a('v_readlane_b32 s%d, v61, s3\ns_add_u32 s3, s3, 1\ns_nop 0\nv_cmp_gt_u32 vcc, s%d, v61\ns_nop 1\nv_addc_co_u32 v63, vcc, 0, v63, vcc',sT,sT)
    a('ds_add_u32 v58, v63 offset:256')
    prej(3,J)
    a('''s_waitcnt lgkmcnt(0)
s_barrier''')
    stamp(a,opt,6,1)
    a('''v_cmp_gt_u32 vcc, 40, v{L}
ds_read_b32 v63, v58 offset:256'''.format(L=vLane))
    prej(2,3)
    a('''s_waitcnt lgkmcnt(0)
v_cndmask_b32 v63, v{L}, v63, vcc
v_lshlrev_b32 v63, 2, v63
ds_permute_b32 v64, v63, v61
v_and_b32 v65, 1, v{L}
v_cmp_eq_u32 vcc, 0, v65
s_waitcnt lgkmcnt(0)
v_lshrrev_b32 v66, 6, v64
v_and_b32 v64, 63, v64
v_sub_u32 v64, 63, v64
v_mov_b32_dpp v67, v66 quad_perm:[0,0,2,2] row_mask:0xf bank_mask:0xf
v_cndmask_b32 v68, 0, v66, vcc'''.format(L=vLane))
    scan(a,68)
    a('''v_sub_u32 v69, v68, v67
v_readlane_b32 s3, v68, 63
v_lshl_add_u32 v69, v69, 1, v65
v_lshlrev_b32 v70, 2, v64
v_add_u32 v70, {NB}, v70
ds_write_b32 v70, v69
v_cmp_eq_u32 vcc, 0, v67
v_mul_u32_u24 v64, {PROW}, v64
v_mov_b32 v70, 0x100000
s_add_u32 s3, s3, 7
s_lshr_b32 s3, s3, 3
v_cndmask_b32 v64, v64, v70, vcc
v_cndmask_b32 v{pend}, v68, v70, vcc
ds_write_b32 v58, v64 offset:768
s_max_u32 s{Ls}, s3, 16
s_cmp_le_u32 s{Ls}, {cap}
s_cbranch_scc1 B_fit
s_cmp_gt_u32 s{wd}, 2
s_cselect_b32 s{wd}, 2, 1
s_waitcnt lgkmcnt(0)
s_barrier
s_branch B_round
B_fit:
v_cvt_f32_u32 v71, s{Ls}
v_rcp_f32 v71, v71
s_mov_b32 s{T}, {DA}
v_mul_f32 v72, 0.5, v71
v_mov_b32 v79, {CA}'''.format(NB=L_NB,PROW=PROW,pend=vPend,Ls=sL,cap=STEPCAP//8,wd=sWd,T=sT,DA=L_YA-32*SH,CA=L_DA))
    a('v_readlane_b32 s3, v67, 38\ns_or_b32 s3, s3, s%d\ns_cbranch_scc1 B_nozero',sI0)
    a('v_mov_b32 v116, 0\nv_mov_b32 v117, 0\nv_mov_b32 v118, 0\nv_mov_b32 v119, 0\nv_lshlrev_b32 v120, 4, v%d\nv_add_u32 v121, 0x10000, v120'%vTid)
    for i in range(13): a('ds_write_b128 v%d, v[116:119] offset:%d',120 if i<8 else 121,(i&7)*8192)
    a('v_cmp_gt_u32 vcc, %d, v249\ns_mov_b64 exec, vcc\nds_write_b128 v121, v[116:119] offset:%d\ns_mov_b64 exec, -1',(L_W-13*8192)//16,5*8192)
    a('B_nozero:')
    stamp(a,opt,7,1)
    for j in range(J):
        a('s_mov_b64 exec, %s\ns_cbranch_execz B_n_done\nds_read_b32 v%d, v%d offset:%d',sr(sEX+2*j,2),36+j,36+j,L_NB-L_CNT)
    a("""B_n_done:
s_mov_b64 exec, -1
s_mul_i32 s{c0}, s{w}, s{L}
s_add_u32 s{en}, s{c0}, s{L}
s_mov_b32 s{cur}, s{c0}
s_cmp_eq_u32 s{i0}, 0
s_cselect_b32 s{thr}, s{en}, 0
s_and_b32 s3, s{L}, 15
s_sub_u32 s{u0}, 16, s3
s_lshr_b32 s{it}, s{L}, 4
s_lshl_b32 s{L32}, s{L}, 5
s_sub_u32 s{bk}, 512, s{L32}
s_mov_b32 s{ph}, 0
s_movk_i32 s{inc}, 512
s_mov_b32 s{wi}, 0
s_mov_b32 s{xa}, 0
v_cmp_ge_u32 vcc, s{c0}, v{pend}
v_lshrrev_b32 v80, 2, v{kh}
v_mov_b32 v{lp}, v{LOFF}
v_mov_b32 v{xo}, v{LOFF}
v_lshlrev_b32 v{wad}, 4, v{lane}
s_bcnt1_i32_b64 s{p2}, vcc
s_mov_b32 s{p20}, s{p2}
v_add_u32 v{wad}, {LW}, v{wad}
s_lshl_b32 s3, s{p2}, 2
s_add_u32 s3, s3, {ROW}
v_add_u32 v{rp}, s3, v80
v_mov_b32 v80, s{L32}
s_waitcnt lgkmcnt(0)""".format(**K))
    for j in range(J):
        a("""s_mov_b64 exec, {ex}
s_cbranch_execz B_s_done
v_lshrrev_b32 v73, 6, v{pos}
v_lshl_add_u32 v73, v73, 1, v{nb}
v_lshrrev_b32 v75, 1, v73
v_cvt_f32_u32 v74, v75
v_fma_f32 v74, v74, v71, v72
v_cvt_u32_f32 v74, v74
v_mad_u32_u24 v74, v74, s{L}, {SH}
v_cmp_lt_u32 vcc, v75, v74
v_mad_u32_u24 v75, v73, 24, v79
v_lshl_add_u32 v76, v73, 2, v79
v_lshl_add_u32 v73, v73, 4, s{T}
v_cndmask_b32 v74, 0, v80, vcc
v_add_u32 v74, v74, v73
ds_write2_b64 v75, {q0}, {q1} offset1:1
ds_write_b64 v75, {q2} offset:16
ds_write_b32 v76, v{m3} offset:{rc}
ds_write_b96 v73, {cv} offset:{ya}
ds_write_b32 v74, v{c3} offset:12""".format(ex=sr(sEX+2*j,2),pos=28+j,nb=36+j,mv=vr(4*j,4),cv=vr(88+4*j,3),c3=88+4*j+3,ya=32*SH,q0=vr(CR+6*j,2),q1=vr(CR+6*j+2,2),q2=vr(CR+6*j+4,2),m3=4*j+3,rc=L_REC-L_DA,L=sL,T=sT,SH=SH))
    a("""B_s_done:
s_mov_b64 exec, -1
s_lshl_b32 s3, s{c0}, 5
s_add_u32 s3, s3, {YS}
v_add_u32 v82, s3, v{kh}
s_lshl_b32 s{T}, s{u0}, 5
s_sub_u32 s3, s{c0}, s{u0}
s_lshl_b32 s3, s3, 3
s_add_u32 s3, s3, {RC}
v_add_u32 v83, s3, v{pat}
v_add_u32 v{rec}, 128, v83
s_mul_i32 s3, s{c0}, 48
s_add_u32 s3, s3, {DA}
v_lshrrev_b32 v84, 1, v{kh}
v_add3_u32 v84, v84, v{kh}, s3
v_and_b32 v85, 0xff, v234
v_cmp_eq_u32 vcc, 3, v{dam}
v_add_u32 v85, {LC}, v85
v_lshrrev_b32 v78, 8, v234
v_cndmask_b32 v85, v85, v84, vcc
v_cmp_eq_u32 vcc, 3, v{cbm}
v_and_b32 v77, 8, v{lane}
v_add3_u32 v84, v84, v77, 8
v_add_u32 v78, {LC}, v78
v_cndmask_b32 v84, v78, v84, vcc
s_cmp_gt_u32 s{u0}, 15
s_cselect_b32 s3, 512, 0
s_sub_u32 s3, s3, s{T}
s_add_u32 s3, s3, {dYA}
v_add_u32 v{ya}, s3, v82
s_cmp_gt_u32 s{u0}, 14
s_cselect_b32 s3, 512, 0
s_sub_u32 s3, s3, s{T}
s_ashr_i32 s3, s3, 1
v_mad_i32_i24 v{da}, v{dam}, s3, v85
v_mad_i32_i24 v{cb}, v{cbm}, s3, v84
v_mov_b32 v{t0}, v85
v_mov_b32 v{t1}, v84
s_movk_i32 s{ih}, 256
v_add_u32 v81, s{L32}, v82
s_sub_u32 s3, 0x3e0, s{T}""".format(**K))
    stamp(a,opt,8,1)
    for r in range(DEP):
        a('s_and_b32 s3, s3, %d\nv_add_u32 v%d, s3, v81\ns_add_u32 s3, s3, 32',32*DEP-32,F0+r)
    a('s_add_u32 s%d, s%d, 1\ns_and_b32 s%d, s%d, %d\ns_waitcnt lgkmcnt(0)\ns_barrier',sInc8,sU0,sInc8,sInc8,DEP-1)
    stamp(a,opt,3)
    e=Asm(); yw=12
    if not opt.get('noprio'): e('s_setprio 3')
    e('ds_read_b32 v%d, v81 offset:%d',F0+8,yw)
    e('ds_read_b32 v86, v83\nds_read_b32 v%d, v%d',vRecA,vREC)
    for r in range(DEP): e('ds_read_b32 v%d, v%d offset:%d',F0+r,F0+r,yw+32)
    e('\n'.join(trs(0,T0,T1))); e('ds_read_b128 %s, v82 offset:%d\ns_waitcnt lgkmcnt(%d)',vr(Y0,4),32*SH,DEP+3)
    e('v_add_u32 v%d, v%d, v%d\nv_add_u32 v86, v%d, v86\nv_add_u32 v%d, v%d, v%d',F0+8,F0+8,LOFF,vKh16,vRecA,vKh16,vRecA)
    e('s_lshl_b32 s3, s%d, 3\nv_cmp_gt_u32 vcc, s3, v%d\nv_mov_b32 v87, 0x7fff0000\ns_cmp_gt_u32 s%d, 8\nv_cndmask_b32 v86, v86, v87, vcc\ns_cselect_b64 vcc, %s, 0',sU0,vPat,sU0,sr(sMhi,2))
    for l in xloads(ACC+4,F0+8): e(l)
    e('v_cndmask_b32 v86, v86, v%d, vcc',vRecA); e(eald(EA,86))
    e('s_waitcnt lgkmcnt(0)')
    e('s_setprio 1')
    for r in range(DEP): e('v_add_u32 v%d, v%d, v%d',F0+r,F0+r,LOFF)
    for r in range(1,DEP): e('s_cmp_eq_u32 s%d, %d\ns_cbranch_scc1 B_x%d',sInc8,r,r)
    for r in range(DEP):
        e('B_x%d:',r)
        for l in xloads(X0+4*r,F0+r): e(l)
    for r in range(DEP-1):
        e('s_cmp_le_u32 s%d, %d\ns_cbranch_scc1 B_xd',sInc8,r)
        for l in xloads(X0+4*r,F0+r): e(l)
    e('B_xd:')
    for i in range(4): e('v_mov_b32 v%d, v%d',Y0+4+i,Y0+i)
    for l in nextseg(): e(l)
    def cpy(m): return 's_mov_b64 exec, %s\n%s\ns_mov_b64 exec, -1\n%s\ns_nop 0'%(sr(m,2),eald(EA,vRecA),'\n'.join(trs(48,T0,T1)))
    mF=['v_mfma_f32_32x32x16_bf16 %s, %s, %s, 0'%(vr(F0+16*b,16),vr(COEF,4),vr(ACC+4,4)) for b in range(2)]
    e('s_cmp_gt_u32 s%d, 8\ns_cbranch_scc1 B_entB',sU0)
    eA=Asm()
    for p in range(5): eA(wread(p,1,24*p+4)); eA(wread(p,0,park(p,0)))
    eA('s_waitcnt vmcnt(%d) lgkmcnt(0)'%(4*DEP))
    for p in range(5): eA(mfR(p,1,24*p+4))
    for p in range(5): eA(mfR(p,0,park(p,0)))
    eA(mF[0]); eA(mF[1]); eA(cpy(sMhi)); eA('s_nop 7\ns_cmp_le_u32 s%d, 4\ns_cbranch_scc1 B_go',sU0)
    for p in range(5): eA(wread(p,1,park(p,8)))
    eA('s_branch B_go')
    eB=Asm()
    pk=lambda p: W4 if p==4 else 24*(p+1)+20
    for p in range(5): eB(wread(p,0,24*p+16)); eB(wread(p,1,pk(p)))
    eB('s_waitcnt vmcnt(%d) lgkmcnt(0)'%(4*DEP))
    for p in range(5): eB(mfR(p,0,24*p+16))
    for p in range(5): eB(mfR(p,1,pk(p)))
    eB(mF[0]); eB(mF[1]); eB(cpy(sMlo)); eB('s_nop 7\ns_cmp_le_u32 s%d, 12\ns_cbranch_scc1 B_go',sU0)
    for p in range(5): eB(wread(p,0,park(p,0)))
    for x in (eA,eB): check_seq(e.lines+x.lines+step(0,True),'entry')
    a.lines+=e.lines+eA.lines; a('B_entB:'); a.lines+=eB.lines
    a('B_go:\ns_sub_u32 s3, s%d, 1\ns_and_b32 s3, s3, 7\ns_cmp_lt_u32 s3, %d\ns_cbranch_scc1 B_go1\ns_waitcnt vmcnt(0)\nB_go1:',sU0,9-DEP)
    if not opt.get('noprio'): a('s_cmp_lt_u32 s%d, 4\ns_cbranch_scc1 B_go2\ns_setprio 2\nB_go2:',sWave)
    stamp(a,opt,4)
    for u in range(1,16): a('s_cmp_eq_u32 s%d, %d\ns_cbranch_scc1 B_M%d',sU0,u,u)
    a('s_branch B_M0')
    a('.p2align 6')
    for u in range(16):
        a('B_N%d:',u); a('\n'.join(step(u,False))); a('s_cbranch_scc1 B_FL%d',u)
        check_seq(step((u-1)&15,False)+step(u,False)+step((u+1)&15,False),'N%d'%u)
    a('s_branch B_N0')
    for u in range(16):
        a('B_M%d:',u); a('\n'.join(step(u,True))); a('s_cbranch_scc0 B_N%d',(u+1)&15)
        a('B_FL%d:',u); a('\n'.join(flush(u)))
        if u<15: a('s_cbranch_scc1 B_exit'); a('\n'.join(nextseg()))
    a('s_cbranch_scc0 B_seg0\ns_cmp_eq_u32 s%d, 1\ns_cbranch_scc1 B_exit',sPhase)
    if opt.get('dbg') and not opt.get('fine'): a('s_memrealtime s[80:81]')
    a('\n'.join(restart()))
    a('B_seg0:'); a('\n'.join(nextseg())); a('s_branch B_M0')
    check_seq(step(15,False)+flush(15)+restart()+nextseg()+step(0,True),'restart')
    for u in range(16): a('B_FC%d:\ns_call_b64 %s, B_add%d\ns_branch B_FP%d',u,sr(sRet,2),u&1,u)
    for b in range(2): a('\n'.join(addold(b)))
    a('B_exit:')
    stamp(a,opt,6)
    a('''s_add_u32 s{i0}, s{i0}, s{wd}
s_cmp_ge_u32 s{i0}, s{mx}
s_cbranch_scc1 B_gemm
s_waitcnt vmcnt(0) lgkmcnt(0)
{sw}
s_barrier
s_branch B_round'''.format(i0=sI0,wd=sWd,mx=sMax,sw='\n'.join(swp())))
    gemm(a,opt)
    a('B_end:\ns_endpgm')

def gemm(a,opt):
    G=Asm(); OA=80; RB=124; NR=12; GT=172
    G('''B_gemm:
s_waitcnt lgkmcnt(0)
s_mul_i32 s3, s{w}, 20480
s_add_u32 s3, s3, {WF}
v_lshlrev_b32 v{t}, 4, v{L}
s_nop 7'''.format(w=sWave,WF=WF,t=vTmp,L=vLane))
    H0=[s for s in range(20) if not s&2]; H1=[s for s in range(20) if s&2]
    for i in range(1,5): G('s_add_u32 s%d, s3, %d',sEX+i,4096*i)
    PW=dict(zip(H0,list(range(156,184,4))+[240,244,248])); PA=196
    wl=lambda s,d,ad:G('buffer_load_dwordx4 %s, v%d, %s, s%d offen offset:%d',vr(d,4),ad,sr(sWS,4),sEX+s//4,(s&3)*1024)
    G('s_mov_b32 s%d, s3\nv_add_u32 v194, %d, v%d\nv_mov_b32 v195, v%d\ns_cmp_ge_u32 s%d, 4\ns_cbranch_scc1 B_wy',sEX,4*20480,vTmp,vLane,sWave)
    two=opt.get('two')
    if two:
        for s in H0: wl(s,4*s,vTmp); wl(s,PW[s],194)
    G('B_wy:')
    if not two:
        for s in H0: wl(s,4*s,vTmp)
    for s in H1: wl(s,4*s,vTmp)
    G('s_waitcnt vmcnt(%d)',10 if two else 20)
    Pa,Pb0,Pb1,Oa,Ob0,Ob1=ACC,ACC+1,ACC+2,ACC+3,ACC+4,ACC+5
    G('''v_and_b32 v{x}, 15, v{L}
v_lshrrev_b32 v{y}, 4, v{L}
v_mul_u32_u24 v{Pa}, {PROW}, v{x}
v_lshl_add_u32 v{Pa}, v{y}, 4, v{Pa}
s_lshl_b32 s3, s{w}, 5
s_add_u32 s3, s3, {LW}
v_lshl_add_u32 v{z}, v{y}, 3, s3
s_movk_i32 s3, 1040
v_mad_u32_u24 v{Oa}, v{x}, s3, v{z}
v_and_b32 v{x}, 7, v{L}
v_add_u32 v{x}, 32, v{x}
v_mul_u32_u24 v{Pb0}, {PROW}, v{x}
v_lshl_add_u32 v{Pb0}, v{y}, 4, v{Pb0}
v_mad_u32_u24 v{Ob0}, v{x}, s3, v{z}
v_bfe_u32 v{y}, v{L}, 3, 1
v_mul_u32_u24 v{x}, 768, v{y}
v_add_u32 v{Pb1}, v{Pb0}, v{x}
v_lshl_add_u32 v{Ob1}, v{y}, 8, v{Ob0}
s_and_b32 s3, s{w}, 3
v_lshrrev_b32 v{x}, 3, v{L}
v_lshl_add_u32 v{x}, v{x}, 2, s3
v_mul_u32_u24 v{x}, {PROW}, v{x}
v_and_b32 v{y}, 7, v{L}
v_lshl_add_u32 v193, v{y}, 4, v{x}
s_cmp_lt_u32 s{w}, 4
s_cbranch_scc1 B_gw
s_barrier
@HR
s_branch B_g2
B_gw:
s_setprio {gp}
v_and_b32 v{x}, 7, v{L}
v_lshlrev_b32 v{x}, 2, v{x}
v_add_u32 v{x}, {FL}, v{x}
v_mov_b32 v{z}, 128
B_gspin:
ds_read_b32 v{y}, v{x}
s_waitcnt lgkmcnt(0)
v_cmp_gt_i32 vcc, v{z}, v{y}
s_cmp_lg_u64 vcc, 0
s_cbranch_scc1 B_gspin
B_g1:'''.format(x=ACC+6,y=ACC+7,z=ACC+8,L=195,Pa=Pa,Pb0=Pb0,Pb1=Pb1,Oa=Oa,Ob0=Ob0,Ob1=Ob1,PROW=PROW,n0=sN0,T=sT,w=sWave,nn=sNN,FL=L_FLAG,LW=L_W,gp=opt.get('gp',0)))
    i=G.lines.index('    @HR'); G.lines[i:i+1]=['    ds_read_b128 %s, v193 offset:%d'%(vr(OA+4*k,4),256*k) for k in range(11)]+['    s_waitcnt lgkmcnt(4)']
    if not two: G.lines[i:i+13]=['    s_branch B_g1']
    t0=[(0,Pa,0),(1,Pa,16*PROW),(2,Pb0,0)]
    t1=[(3+3*t+j,Pa,16*PROW*t+512+768*j) for t in range(2) for j in range(3)]+[(9,Pb1,512),(10,Pb0,512+1536)]
    ko=lambda s:64*(s if s<8 else s-8)
    def run(ops,extra,vm,NR,two=False):
        rd=lambda i:'ds_read_b128 %s, v%d offset:%d'%(vr(RB+4*(i%NR),4),ops[i][2],ops[i][3])
        q=[]; GS=opt.get('gs',4); assert len(ops)%GS==0
        for i in range(NR-GS): G(rd(i)); q.append(i)
        for i0 in range(0,len(ops),GS):
            for i in range(i0+NR-GS,min(i0+NR,len(ops))): G(rd(i)); q.append(i)
            w='lgkmcnt(%d)'%min(15,len(q)-1-q.index(i0+GS-1))
            vv=[vm[i] for i in range(i0,i0+GS) if i in vm]
            if vv: w='vmcnt(%d) '%min(vv)+w
            G('s_waitcnt '+w)
            for i in range(i0,i0+GS):
                s,ac,ad,off=ops[i]; acc=vr(OA+4*ac,4)
                G('v_mfma_f32_16x16x32_bf16 %s, %s, %s, %s',acc,vr(4*s,4),vr(RB+4*(i%NR),4),'0' if s in(0,8) else acc)
                if two: acc=vr(PA+4*ac,4); G('v_mfma_f32_16x16x32_bf16 %s, %s, %s, %s',acc,vr(PW[s],4),vr(RB+4*(i%NR),4),'0' if s in(0,8) else acc)
                n=0
                while extra and extra[0][0]<=i and n<opt.get('nx',2):
                    l=extra.pop(0)[1]; G(l); n+=1
                    if l.startswith('ds_'): q.append(-1)
    ops=[]; vm={}
    for n,s in enumerate(H0):
        vm[len(ops)]=28-2*n if two else 19-n; ops+=[(s,ac,ad,off+ko(s)) for ac,ad,off in (t0 if s<8 else t1)]
    run(ops,[],vm,8 if two else 12,two)
    if not two: G('s_cmp_ge_u32 s%d, 4\ns_cbranch_scc1 B_g2',sWave)
    else: G('''v_mov_b32 v{z}, 256
ds_write_b32 v{f}, v{z}
B_gspin2:
ds_read_b32 v{y}, v{x}
s_waitcnt lgkmcnt(0)
v_cmp_gt_i32 vcc, v{z}, v{y}
s_and_b32 s3, vcc_lo, 15
s_cbranch_scc1 B_gspin2
s_nop 1'''.format(x=ACC+6,y=ACC+7,z=ACC+8,f=vFlag))
    for k in range(11 if two else 0): G('ds_write_b128 v193, %s offset:%d',vr(PA+4*k,4),256*k)
    stamp(G,opt,7)
    G('s_waitcnt lgkmcnt(0)\ns_barrier\nB_g2:')
    stamp(G,opt,8); stamp(G,opt,5,2)
    st=lambda d,ad,off,so='0':'ds_write_b64 v%d, %s offset:%d'%(ad,vr(d,2),off+(16*1040 if so=='s3' else 0))
    ops=[(s,ac,ad,off+ko(s)) for s in H1[:4] for ac,ad,off in t0]; vm={0:6,12:0}
    ex=[]
    for t in range(3):
        sig=[]
        for c in range(4*t,4*t+4):
            r=OA+c; g=GT+c
            sig+=['v_mul_f32 v%d, 0xbfb8aa3b, v%d'%(g,r),'v_exp_f32 v%d, v%d'%(g,g),'v_add_f32 v%d, 1.0, v%d'%(g,g),'v_rcp_f32 v%d, v%d'%(g,g)]
        r=OA+4*t
        ex+=[(17,sig[4*c+k]) for k in range(4) for c in range(4)]
        ex+=[(17,'v_cvt_pk_bf16_f32 v%d, v%d, v%d'%(r,r,r+1)),(17,'v_cvt_pk_bf16_f32 v%d, v%d, v%d'%(r+1,r+2,r+3)),(17,st(r,Oa if t<2 else Ob0,0,'s3' if t==1 else '0'))]
        for n,(ac,ad,off) in list(enumerate(t1))[3*t:3*t+3]:
            ops+=[(s,ac,ad,off+ko(s)) for s in H1[4:]]
            gt=GT+4*t; r=OA+4*ac; rdy=len(ops)+7
            ex+=[(rdy,'v_mul_f32 v%d, v%d, v%d'%(r+k,r+k,gt+k)) for k in range(4)]
            ex+=[(rdy,'v_cvt_pk_bf16_f32 v%d, v%d, v%d'%(r,r,r+1)),(rdy,'v_cvt_pk_bf16_f32 v%d, v%d, v%d'%(r+1,r+2,r+3))]
            ex.append((rdy,st(r,Oa,256*(1+n%3),'s3' if n>=3 else '0') if n<6 else st(r,Ob1 if n==6 else Ob0,256 if n==6 else 768)))
    ex.sort(key=lambda x:x[0])
    run(ops,ex,vm,12)
    G('s_nop 7')
    for _,l in ex: G(l)
    stamp(G,opt,6,2)
    G('''s_mul_i32 s3, s{w}, 5200
s_add_u32 s3, s3, {LW}
v_add_u32 v0, s3, v{t}
s_mul_i32 s3, s{w}, 5
s_add_u32 s3, s3, s{n0}
s_lshl_b32 s3, s3, 10
s_add_u32 s{T}, s3, 4096
s_add_u32 s{o2}, s{n0}, s{nn}
s_lshl_b32 s{o2}, s{o2}, 10
s_waitcnt lgkmcnt(0)
s_barrier'''.format(w=sWave,LW=L_W,t=vTmp,n0=sN0,nn=sNN,T=sT,o2=sOUT+2))
    stamp(G,opt,7,2)
    for i in range(5): G('ds_read_b128 %s, v0 offset:%d',vr(4+4*i,4),1040*i)
    for i in range(5): G('s_waitcnt lgkmcnt(%d)\nbuffer_store_dwordx4 %s, v%d, %s, s%d offen offset:%d%s',4-i,vr(4+4*i,4),vTmp,sr(sOUT,4),3 if i<4 else sT,(i&3)*1024,{0:'',1:' sc1',2:' nt',3:' sc0 sc1'}[opt.get('of',0)])
    stamp(G,opt,8,2)
    check_seq(G.lines,'gemm')
    a.lines+=G.lines
    if opt.get('dbg'):
        a('s_waitcnt vmcnt(0)'); stamp(a,opt,9)
        a('s_lshl_b32 s3, s2, 3\ns_add_u32 s3, s3, s%d\ns_lshl_b32 s3, s3, 6\ns_add_u32 s3, s3, %d\nv_mov_b32 v20, 0',sWave,STAMP+0x10000)
        for i in range(10): a('v_mov_b32 v%d, s%d',i,70+2*i)
        a('v_mov_b32 v10, s%d\ns_sub_u32 s4, s94, s92\nv_mov_b32 v11, s4\n; clk %d %d',sL,opt.get('c0',4),opt.get('c1',6))
        for i in range(3): a('buffer_store_dwordx4 %s, v20, %s, s3 offen offset:%d',vr(4*i,4),sr(sWS,4),16*i)
```

```python
from asmlib import *
from kA import *
PROW=2848
L_P=0; L_W=40*PROW; STEPCAP=376
L_DA=L_W+14336; L_YA=L_DA+STEPCAP*48; L_REC=L_YA+STEPCAP*32; L_CONST=L_REC+STEPCAP*8
L_CNT=L_CONST+768; L_RANK=L_CNT+256; L_NB=L_RANK+256; L_ROW=L_NB+256; L_MAX=L_ROW+256; L_FLAG=L_MAX+16; L_END=L_FLAG+48
assert L_END<=163840 and L_CONST%16==0
OPT={}
import os
J=7; DEP=int(os.environ.get('DEP',4)); SH=DEP+1
F0=120; X0=152; ACC=184; IDX=206; LOFF=207; COEF=208; D=212; Y0=216; EA=224; W4=228; SEL=232
vDA=235; vYA=236; vXo=237; vREC=238; vDAm=239; vWad=240; vRecA=241; T0=242; T1=243
vRowP=244; vRow=245; vPend=246; vLaneP=247; vKh16=248; vTid=249; vTab=250; vLane=251; vTmp=252; vFlag=253; vJunk=254; vPat=255
sX=8; sWS=12; sOUT=16; sEX=20
sWave=34; sI0=35; sWd=36; sMax=37; sL=38; sU0=39; sC0=40; sCur=41; sEnd=42; sCnt=43; sP2=44; sP20=45
sPhase=46; sIter=47; sInc=48; sInc8=49; sWinc=50; sXoff=51; sXadd=52; sBack=53; sMhi=54; sMlo=56
sTile=58; sN0=59; sNN=60; sREC=61; sT=62; sThr=63; sRet=66; sFl=68; sPe=69; sEAO=64; sK1=96
WA={(4,0):168,(3,1):172,(4,1):176}; WB=[180,212,228]; vCB=232; vCBm=233; CR=126; sIncH=98; sSel=99
def Rr(p,pi,u):
    return 24*p+(((u+8)&15) if pi==0 else (16+u if u<8 else u))
def park(p,u):
    return WA.get((p,u//8),24*(p+1)+u)
def mfR(p,pi,w): d=24*p+8*pi; w=WA.get((p,pi),w); return 'v_mfma_f32_32x32x16_bf16 %s, %s, %s, 0'%(vr(d,16),vr(EA,4),vr(w,4))
def wread(p,pi,dst): return '' if (p,pi) in WA else 'ds_read_b128 %s, v%d offset:%d'%(vr(dst,4),vWad,(pi*4+p)*1024)
def trs(off,a=vDA,b=vCB): return ['ds_read_b64_tr_b16 %s, v%d offset:%d'%(vr(COEF,2),a,off),'ds_read_b64_tr_b16 %s, v%d offset:%d'%(vr(COEF+2,2),b,off)]
def swp(): return ['v_swap_b32 v%d, v%d'%(168+4*q+i,WB[q]+i) for q in range(3) for i in range(4)]
def perms(d=D):
    return ['v_perm_b32 v%d, v%d, v%d, v%d'%(COEF+1+j,d+j,d+(j+2)%3,SEL+j) for j in range(3)]
def fmas(u,pi,first):
    fb=F0+16*(u&1)+8*pi; y=Y0+4*(u&1); t=T0+pi
    def op(k,a,b): return ('v_mul_f32' if first else 'v_fmac_f32')+' v%d, v%d, v%d'%(ACC+2*k+pi,a,b)
    o=[op(0,fb,Rr(0,pi,u)),op(1,fb+4,Rr(1,pi,u)),'v_mul_f32 v%d, v%d, v%d'%(t,fb,Rr(2,pi,u))]
    o+=[op(3+3*j,fb+1+j,Rr(3,pi,u)) for j in range(3)]
    o+=[op(2+3*j,t,y+j) for j in range(3)]
    o+=[op(4+3*j,fb+5+j,Rr(4,pi,u)) for j in range(3)]
    return o
def xloads(dst,idx=IDX):
    return ['global_load_dword v%d, v%d, s[4:5] offset:%d'%(dst+j,idx,256*j) for j in range(4)]
def step(u,first):
    o=[]; burst=u in(0,8); pa=1 if u==0 else 0
    f=fmas(u,pa,first)+fmas(u,1-pa,first)
    xr=X0+4*((u+1)&(DEP-1))
    mF='v_mfma_f32_32x32x16_bf16 %s, %s, %s, 0'%(vr(F0+16*((u+1)&1),16),vr(COEF,4),vr(xr,4))
    pre=[]
    if u==16-SH: pre.append('v_add_u32 v%d, s%d, v%d'%(vXo,sXadd,vXo))
    pre.append('v_add_u32 v%d, v%d, v%d'%(IDX,Y0+4*(u&1)+3,vXo))
    if u==14: pre+=['v_mad_i32_i24 v%d, v%d, s%d, v%d'%(x,m,sIncH,x) for x,m in ((vDA,vDAm),(vCB,vCBm))]
    if u==15: pre.append('v_add_u32 v%d, s%d, v%d'%(vYA,sInc,vYA))
    if u==12: pre.append('v_add_u32 v%d, s%d, v%d'%(vWad,sWinc,vWad))
    tail=trs(((u+2)&15)*48)+['ds_read_b128 %s, v%d offset:%d'%(vr(Y0+4*((u+1)&1),4),vYA,((u+1)&15)*32)]
    if (u&7) in (4,5,6):
        nb=8 if u<8 else 0
        for p in {4:(0,1),5:(2,3),6:(4,)}[u&7]: tail.append(wread(p,1 if nb==8 else 0,park(p,nb)))
    tail=[x for x in tail if x]; tail=xloads(xr)+tail if OPT.get('lf') else tail+xloads(xr)
    if burst:
        tail+=['s_mov_b64 exec, %s'%sr(sMhi if u==0 else sMlo,2),eald(EA,vRecA),'s_mov_b64 exec, -1']
        o.append('s_waitcnt vmcnt(%d) lgkmcnt(0)'%(4*DEP-4))
        for p in range(5):
            o.append(mfR(p,1-pa,park(p,u)))
            if p==0 and u==0:
                o+=['s_sub_u32 s%d, s%d, 1'%(sIter,sIter),'s_cmp_eq_u32 s%d, 0'%sIter,'s_cselect_b32 s%d, s%d, 512'%(sInc,sBack),
                    's_cselect_b32 s%d, 7168, 0'%sWinc,'s_cselect_b32 s%d, 128, 0'%sXadd,
                    's_ashr_i32 s%d, s%d, 1'%(sIncH,sInc),'s_ashr_i32 s%d, s%d, 2'%(sT,sInc),'v_add_u32 v%d, s%d, v%d'%(vREC,sT,vREC),'ds_read_b32 v%d, v%d'%(vRecA,vREC)]
            if p==2: o+=pre
            else: o+=f[:3]; f=f[3:]
        if u==0: o+=['s_waitcnt lgkmcnt(0)','v_add_u32 v%d, v%d, v%d'%(vRecA,vKh16,vRecA)]
    else:
        nf=OPT.get('nf',4); f=f[:6]+f[9:12]+f[6:9]+f[12:]; np_=OPT.get('np',1)
        o+=f[:nf]+['s_waitcnt vmcnt(%d) lgkmcnt(0)'%(4*DEP-4+(1 if (u&7)<=DEP else 0))]+pre+f[nf:nf+np_]; f=f[nf+np_:]
    if OPT.get('late') and u==OPT['late']: tail=tail+['s_cmp_lg_u32 s%d, %d'%(sIter,OPT.get('lit',-1)),'s_cbranch_scc1 1','s_setprio 1']
    o+=[mF]+tail+['s_sub_u32 s%d, s%d, 1'%(sCnt,sCnt)]+f
    return o
def nextseg():
    return ['ds_read_b32 v%d, v%d'%(vRow,vRowP),'v_readlane_b32 s%d, v%d, s%d'%(sPe,vPend,sP2),'s_not_b32 s%d, s%d'%(sCnt,sCur),
            's_min_u32 s%d, s%d, s%d'%(sCur,sPe,sEnd),'s_add_u32 s%d, s%d, s%d'%(sCnt,sCnt,sCur)]
def flush(u,lab=True):
    o=['v_add_u32 v%d, v%d, v%d'%(vTmp,vRow,vLaneP),'s_cmp_ge_u32 s%d, s%d'%(sCur,sThr),'s_cbranch_scc1 B_FC%d'%u,'B_FP%d:'%u]
    o+=['v_cvt_pk_bf16_f32 v%d, v%d, v%d'%(ACC+2*k,ACC+2*k,ACC+2*k+1) for k in range(11)]
    o+=['v_add_u32 v%d, 8, v%d'%(vRowP,vRowP),'s_add_u32 s%d, s%d, 2'%(sP2,sP2),'s_cmp_eq_u32 s%d, s%d'%(sCur,sEnd)]
    o+=['ds_write2st64_b32 v%d, v%d, v%d offset0:%d offset1:%d'%(vTmp,ACC+2*k,ACC+2*k+2,k,k+1) for k in range(0,10,2)]
    o+=['ds_write_b32 v%d, v%d offset:2560'%(vTmp,ACC+20),'ds_write_b32 v%d, v%d'%(vFlag,vLaneP)]
    return o
def addold(b):
    f=F0+16*b
    o=['B_add%d:'%b,'s_cmp_gt_u32 s%d, s%d'%(sPe,sThr),'s_cbranch_scc0 B_ret%d'%b,'s_lshl_b32 s%d, s%d, 7'%(sFl,sPhase),'s_cmp_eq_u32 s%d, s%d'%(sCur,sEnd),'s_cselect_b32 s%d, s%d, -1'%(sFl,sFl),
       'B_spin%d:'%b,'ds_read_b32 v%d, v%d offset:4'%(f+11,vFlag)]
    o+=['ds_read2st64_b32 %s, v%d offset0:%d offset1:%d'%(vr(f+k,2),vTmp,k,k+1) for k in range(0,10,2)]
    o+=['ds_read_b32 v%d, v%d offset:2560'%(f+10,vTmp),'s_waitcnt lgkmcnt(0)','v_readfirstlane_b32 s%d, v%d'%(sT,f+11),
        's_cmp_lt_i32 s%d, s%d'%(sT,sFl),'s_cbranch_scc1 B_spin%d'%b]
    for k in range(11):
        o+=['v_dot2c_f32_bf16 v%d, s%d, v%d'%(ACC+2*k,sK1,f+k),'v_dot2c_f32_bf16 v%d, s%d, v%d'%(ACC+2*k+1,sK1+1,f+k)]
    o.append('s_nop 1')
    o+=['B_ret%d:'%b,'s_setpc_b64 %s'%sr(sRet,2)]
    return o
def restart():
    o=[wread(p,1,24*p+4) for p in range(3)]+swp()
    o+=['s_mov_b32 s%d, 1'%sPhase,'s_mov_b32 s%d, s%d'%(sCur,sC0),'s_sub_u32 s%d, s%d, s%d'%(sT,sP2,sP20),'s_lshl_b32 s%d, s%d, 2'%(sT,sT),
        's_mov_b32 s%d, s%d'%(sP2,sP20),'v_subrev_u32 v%d, s%d, v%d'%(vRowP,sT,vRowP),'v_add_u32 v%d, 128, v%d'%(vLaneP,vLaneP),
        's_lshl_b32 s%d, s%d, 5'%(sT,sEnd),'s_add_u32 s%d, s%d, %d'%(sT,sT,L_YA+12-32*SH),'v_lshl_add_u32 v%d, v%d, 4, s%d'%(T0,vLane,sT),'v_mov_b32 v%d, 0'%T1,
        's_mov_b64 exec, 0x%x'%((1<<(2*SH))-1),'ds_write_b32 v%d, v%d'%(T0,T1),'s_mov_b64 exec, -1',
        's_setprio 1' if not OPT.get('late') else 's_nop 0','s_waitcnt vmcnt(%d) lgkmcnt(0)'%(28 if DEP==8 else 4*DEP)]
    o+=[mfR(p,1,24*p+4) for p in range(5)]+['s_nop 0']
    return o
def stamp(a,opt,i,fine=0):
    if i in (5,6,7,8) and opt.get('fine',0)!=fine: return
    if opt.get('dbg'):
        if i==opt.get('c0',4): a('s_memtime s[92:93]')
        if i==opt.get('c1',6): a('s_memtime s[94:95]')
        a('s_memrealtime s[%d:%d]\ns_waitcnt lgkmcnt(0)',70+2*i,71+2*i)

def eald(d,ad): return 'buffer_load_dwordx4 %s, v%d, %s, %s offen'%((vr(d,4),ad)+((sr(sX,4),'0') if OPT.get('de') else (sr(sWS,4),'s%d'%sEAO)))
K=dict(c0=sC0,w=sWave,L=sL,en=sEnd,cur=sCur,u0=sU0,it=sIter,bk=sBack,ph=sPhase,inc=sInc,wi=sWinc,xo=vXo,xa=sXadd,i0=sI0,thr=sThr,L32=sXoff,
        pend=vPend,kh=vKh16,lp=vLaneP,LOFF=LOFF,wad=vWad,lane=vLane,p2=sP2,p20=sP20,LW=L_W,ROW=L_ROW,rp=vRowP,DA=L_DA,T=sT,
        rec=vREC,LC=L_CONST,dam=vDAm,dYA=32*SH,ya=vYA,da=vDA,pat=vPat,YS=L_YA-32*SH,RC=L_REC,cb=vCB,cbm=vCBm,t0=T0,t1=T1,ih=sIncH)
def genB(a,opt,name):
    OPT.clear(); OPT.update(opt); de=opt.get('de'); RS=16
    a('''.globl %s
.p2align 8
.type %s,@function
%s:
s_cmp_ge_u32 s2, 256
s_cbranch_scc1 B_end''',name,name,name)
    stamp(a,opt,0)
    a('''s_load_dwordx2 s[4:5], s[0:1], 0
s_load_dwordx2 s[6:7], s[0:1], 72
s_load_dwordx2 s[64:65], s[0:1], 88
s_load_dwordx2 s[66:67], s[0:1], 16
s_and_b32 s3, s2, 7
s_lshl_b32 s3, s3, 5
s_lshr_b32 s%d, s2, 3
s_add_u32 s%d, s%d, s3''',sTile,sTile,sTile)
    a('''v_mov_b32 v%d, v0
v_and_b32 v%d, 63, v0
v_lshrrev_b32 v1, 6, v0
v_lshrrev_b32 v2, 1, v0
v_readfirstlane_b32 s%d, v1
v_lshlrev_b32 v2, 5, v2
s_lshr_b32 s3, s%d, 3
s_lshl_b32 s3, s3, 11
s_lshr_b32 s62, s2, 3
s_and_b32 s62, s62, 7
s_add_u32 s3, s3, s62
s_lshl_b32 s3, s3, 2
v_lshlrev_b32 v3, 4, v0
v_mov_b32 v%d, 0
v_cmp_gt_u32 vcc, 500, v0
s_mov_b32 s%d, %d
s_waitcnt lgkmcnt(0)''',vTid,vLane,sWave,sTile,vTab,sREC,REC)
    srd(a,sWS,64,WSSZ if not opt.get('dbg') else STAMP+0x100000)
    a('''s_mov_b64 exec, vcc
buffer_load_dword v%d, v2, %s, s3 offen
s_mov_b64 exec, -1
s_mov_b32 s%d, %d''',vTab,sr(sWS,4),sEAO,EAO)
    a('''s_mov_b32 s3, {WR}
buffer_load_dwordx4 v[128:131], v3, {ws}, s3 offen
s_add_u32 s3, s3, 8192
buffer_load_dwordx4 v[132:135], v3, {ws}, s3 offen
s_add_u32 s3, s3, 8192
v_lshlrev_b32 v140, 3, v{t}
buffer_load_dwordx2 v[136:137], v140, {ws}, s3 offen'''.format(WR=WR,ws=sr(sWS,4),t=vTid))
    npf=3
    def pf(rnd,reg):
        a('''s_and_b32 s3, s2, 7
s_mul_i32 s3, s3, 1250
s_lshr_b32 s%d, s2, 3
s_lshl_b32 s%d, s%d, 7
s_add_u32 s3, s3, s%d
s_add_u32 s3, s3, %d
v_lshrrev_b32 v%d, 2, v%d
v_add_u32 v%d, s3, v%d
v_subrev_u32 v%d, 10000, v%d
v_min_u32 v%d, v%d, v%d
v_and_b32 v%d, 3, v%d
v_lshlrev_b32 v%d, 8, v%d
v_lshl_add_u32 v%d, v%d, 10, v%d
global_load_dword v%d, v%d, s[4:5]''',sT,sT,sT,sT,rnd*4096,reg,vTid,reg,reg,reg+1,reg,reg,reg,reg+1,reg+1,vTid,reg+1,reg+1,reg,reg,reg+1,vJunk,reg)
    def pf2(reg):
        a('''s_lshl_b32 s3, s2, 3
s_add_u32 s3, s3, s%d
s_mul_i32 s3, s3, 20
v_add_u32 v%d, s3, v%d
v_min_u32 v%d, 39999, v%d
v_lshlrev_b32 v%d, 8, v%d
s_mov_b64 exec, %d
global_load_dword v%d, v%d, s[4:5] offset:%d
s_mov_b64 exec, -1''',sWave,reg,vLane,reg,reg,reg,reg,(1<<opt.get('pn',20))-1,vJunk,reg,0 if opt['pf']&8 else 128)
    if opt.get('pf',0)&1: pf(0,112); npf=4
    srd(a,sOUT,6,10240000); srd(a,sX,66,5120000)
    a('''s_mul_i32 s3, s%d, 625
s_add_u32 s%d, s3, 15
s_lshr_b32 s%d, s%d, 4
s_add_u32 s3, s3, 640
s_lshr_b32 s3, s3, 4
s_sub_u32 s%d, s3, s%d
s_mov_b32 s%d, 0
s_mov_b32 s%d, %d
s_mov_b32 s%d, 0xffff0000
s_mov_b32 s%d, 0xffff0000
s_mov_b32 s%d, 0xffff
s_mov_b32 s%d, 0xffff''',sTile,sN0,sN0,sN0,sNN,sN0,sI0,sWd,2*J,sMhi,sMhi+1,sMlo,sMlo+1)
    a('s_mov_b32 s%d, 0x3f80\ns_mov_b32 s%d, 0x3f800000',sK1,sK1+1)
    a('v_mov_b32 v19, 0xa5\nv_mov_b32 v20, 0x84')
    a('''v_and_b32 v10, 31, v{L}
v_lshlrev_b32 v{LOFF}, 2, v10
v_lshrrev_b32 v11, 5, v{L}
v_lshlrev_b32 v{kh}, 4, v11
v_bfe_u32 v12, v{L}, 2, 1
v_bfe_u32 v13, v{L}, 4, 1
v_xor_b32 v13, v13, v12
v_and_b32 v14, 1, v{L}
v_xor_b32 v14, v14, v11
v_or_b32 v13, v13, v14
v_bfe_u32 v14, v{L}, 1, 1
v_lshl_or_b32 v13, v13, 1, v14
v_bfe_u32 v15, v{L}, 3, 1
v_cmp_eq_u32 vcc, 1, v13
v_mov_b32 v16, 3
v_lshlrev_b32 v17, 3, v15
v_cndmask_b32 v{cbm}, 0, v16, vcc
v_mul_u32_u24 v{m}, v{cbm}, v15
v_cmp_eq_u32 vcc, 0, v13
v_mov_b32 v16, 32
v_add_u32 v14, 16, v17
v_cndmask_b32 v{k1}, v16, v17, vcc
v_cndmask_b32 v14, v16, v14, vcc
v_lshl_or_b32 v{k1}, v14, 8, v{k1}
s_mov_b32 s{sel}, 0x07060302
v_mul_u32_u24 v14, 171, v0
v_lshrrev_b32 v14, 11, v14
v_mul_u32_u24 v14, 12, v14
v_sub_u32 v14, v0, v14
v_lshrrev_b32 v15, v14, v{a5}
v_and_b32 v15, 1, v15
v_mul_u32_u24 v15, 0x3f80, v15
v_lshrrev_b32 v14, v14, v{x84}
v_and_b32 v14, 1, v14
v_lshlrev_b32 v14, 4, v14
v_lshlrev_b32 v16, v14, v15'''.format(L=vLane,LOFF=LOFF,kh=vKh16,cbm=vCBm,m=vDAm,k1=234,sel=sSel,a5=19,x84=20))
    a('''v_lshlrev_b32 v18, 2, v0
v_add_u32 v18, {LC}, v18
v_cmp_gt_u32 vcc, 192, v0
s_mov_b64 exec, vcc
s_cbranch_execz B_noc
ds_write_b32 v18, v16
B_noc:
s_mov_b64 exec, -1
v_bfe_u32 v16, v{L}, 3, 2
v_and_b32 v17, 3, v{L}
v_lshl_add_u32 v16, v16, 2, v17
v_xor_b32 v16, 8, v16
v_lshl_add_u32 v16, v16, 1, v12
v_lshlrev_b32 v{pat}, 2, v16
s_lshl_b32 s3, s{w}, 2
s_add_u32 s3, s3, {FL}
v_lshl_add_u32 v{fl}, v{L}, 20, s3
s_waitcnt vmcnt({npf})'''.format(C=COEF,m=vDAm,LC=L_CONST,LW=L_W,w=sWave,L=vLane,pat=vPat,FL=L_FLAG,fl=vFlag,npf=npf))
    a('B_round:')
    stamp(a,opt,1)
    a('''v_and_b32 v44, 1, v{t}
v_add_u32 v44, s{i0}, v44
v_lshrrev_b32 v45, 16, v{tab}
s_add_u32 s3, s{i0}, s{wd}
v_min_u32 v46, s3, v45
v_and_b32 v47, 0xffff, v{tab}
v_lshrrev_b32 v48, 1, v{t}
v_mul_u32_u24 v48, 640, v48
v_add3_u32 v47, v47, v48, v44
v_lshlrev_b32 v43, 5, v47
v_lshlrev_b32 v47, 4, v47'''.format(RS=RS,t=vTid,i0=sI0,tab=vTab,wd=sWd))
    for j in range(J):
        a('v_cmp_lt_u32 %s, v44, v46\nv_add_u32 v44, 2, v44',sr(sEX+2*j,2))
    for j in range(J):
        a('s_mov_b64 exec, %s\ns_cbranch_execz B_ld_done\nbuffer_load_dwordx4 %s, v47, %s, s%d offen offset:%d',sr(sEX+2*j,2),vr(4*j,4),sr(sWS,4),sREC,2*RS*j)
    a('B_ld_done:\ns_mov_b64 exec, -1')
    a('s_cmp_lg_u32 s%d, %d\ns_cbranch_scc1 B_now\ns_cmp_lg_u32 s%d, 0\ns_cbranch_scc1 B_now',sWd,2*J,sI0)
    for k in range(J,-1,-1):
        if k: a('s_cmp_eq_u64 %s, 0\ns_cbranch_scc1 B_wk%d',sr(sEX+2*k-2,2),k)
        a('s_waitcnt vmcnt(%d)',k)
        if k: a('s_branch B_wk0\nB_wk%d:',k)
    a('B_wk0:\nv_lshlrev_b32 v141, 4, v%d\nv_add_u32 v141, %d, v141\nds_write_b128 v141, v[128:131]\ns_cmp_ge_u32 s%d, 6\ns_movk_i32 s3, 8192\ns_cselect_b32 s3, %d, s3\nv_add_u32 v141, s3, v141\nds_write_b128 v141, v[132:135]\nds_write_b64 v140, v[136:137] offset:2048\nB_now:',vTid,L_W,sWave,-L_W-6144)
    if opt.get('pp')==2: pf2(122)
    a('''v_lshlrev_b32 v49, 4, v{t}
v_add_u32 v50, {DA}, v49
v_mov_b32 v52, 0
v_mov_b32 v53, 0
v_mov_b32 v54, 0
v_mov_b32 v55, 0
v_mov_b32 v56, 0x7fff0000
v_mov_b32 v57, 0x7fff0000
v_lshlrev_b32 v51, 3, v{t}
v_add_u32 v51, {RC}, v51
v_cmp_gt_u32 vcc, {sc}, v{t}
ds_write_b128 v50, v[52:55]
ds_write_b128 v50, v[52:55] offset:8192
ds_write_b128 v50, v[52:55] offset:16384
s_mov_b64 exec, vcc
ds_write_b64 v51, v[56:57]
v_cmp_gt_u32 vcc, {n3}, v{t}
s_mov_b64 exec, vcc
ds_write_b128 v50, v[52:55] offset:24576
s_mov_b64 exec, -1
v_lshlrev_b32 v58, 2, v{L}
v_add_u32 v58, {CNT}, v58
s_cmp_lg_u32 s{w}, 0
s_cbranch_scc1 B_i1
v_sub_u32 v59, 63, v{L}
ds_write_b32 v58, v59
ds_write_b32 v58, v52 offset:256
v_cmp_eq_u32 vcc, 12, v{L}
v_mov_b32 v59, -1
v_mov_b32 v60, 0x1000
v_cndmask_b32 v59, v59, v60, vcc
v_cmp_gt_u32 vcc, 4, v{L}
s_mov_b64 exec, 0xffff
s_nop 0
v_cndmask_b32 v59, v59, v52, vcc
ds_write_b32 v58, v59 offset:1024
s_mov_b64 exec, -1
B_i1:
s_waitcnt lgkmcnt(0)
s_barrier
s_cmp_lg_u32 s{wd}, {J2}
s_cbranch_scc1 B_now2
s_cmp_lg_u32 s{i0}, 0
s_cbranch_scc1 B_now2
v_lshlrev_b32 v59, 4, v{L}
ds_read_b128 v[168:171], v59 offset:0
ds_read_b128 v[172:175], v59 offset:1024
ds_read_b128 v[176:179], v59 offset:2048
ds_read_b128 v[180:183], v59 offset:3072
ds_read_b128 v[212:215], v59 offset:4096
ds_read_b128 v[228:231], v59 offset:5120
B_now2:
v_mov_b32 v59, {MAX}
v_cmp_gt_u32 vcc, v45, v46
s_mov_b64 exec, vcc
s_cbranch_execz B_nomax
ds_max_u32 v59, v45
B_nomax:
s_mov_b64 exec, -1
v_mov_b32 v60, 64
s_waitcnt vmcnt({np})'''.format(np=1 if opt.get('pp')==2 else 0,wd=sWd,J2=2*J,i0=sI0,t=vTid,DA=L_DA,n3=STEPCAP*5-1536,sc=STEPCAP,RC=L_REC,dYA=L_YA-L_DA,dYA2=L_YA-L_DA+8192,L=vLane,CNT=L_CNT,w=sWave,MAX=L_MAX))
    def prej(j0,j1):
        for j in range(j0,j1):
            if j>2: a('s_cmp_eq_u64 %s, 0\ns_cbranch_scc1 B_pj',sr(sEX+2*j,2))
            m=4*j; c=88+4*j
            a('v_and_b32 v%d, 0xffff0000, v%d\nv_and_b32 v%d, 0xffff0000, v%d\nv_and_b32 v%d, 0xffff0000, v%d\nv_and_b32 v%d, 0xffff, v%d\nv_min_u32 v%d, 9999, v%d\nv_lshlrev_b32 v%d, 10, v%d',
              c,m,c+1,m+1,c+2,m+2,c+3,m+3,c+3,c+3,c+3,c+3)
            q=CR+6*j
            a('v_lshrrev_b32 v%d, 16, v%d\nv_alignbit_b32 v%d, v%d, v%d, 16\nv_alignbit_b32 v%d, v%d, v%d, 16\nv_mov_b32 v%d, v%d\nv_perm_b32 v%d, v%d, v%d, s%d\nv_and_b32 v%d, 0xffff, v%d',
              q,m,q+1,m,m+2,q+2,m+1,m+1,q+3,c,q+4,m+1,m+2,sSel,q+5,m+2)
            if de: a('v_lshrrev_b32 v%d, 22, v%d\nv_add_lshl_u32 v%d, v%d, v48, 5',m+3,m+3,m+3,m+3)
            else: a('v_add_u32 v%d, %d, v43',m+3,64*j)
        if j1==J: a('B_pj:')
    stamp(a,opt,2)
    if opt.get('pp')==1: pf2(122)
    if opt.get('pf',0)&2: pf(opt['pf']&1,120)
    if opt.get('tlb'):
        a('v_mul_u32_u24 v120, %d, v%d\nglobal_load_dword v%d, v120, s[4:5]',{1:20000,2:160000}[opt['tlb']],vTid if opt['tlb']==1 else vLane,vJunk)
    a('s_mov_b32 s3, %d',L_CNT)
    for j in range(J):
        a('s_mov_b64 exec, %s\ns_cbranch_execz B_c_done\nv_bfe_u32 v%d, v%d, 16, 6\nv_lshl_add_u32 v%d, v%d, 2, s3\nds_add_rtn_u32 v%d, v%d, v60',
          sr(sEX+2*j,2),36+j,4*j+3,36+j,36+j,28+j,36+j)
    a('B_c_done:\ns_mov_b64 exec, -1')
    if not opt.get('noep'):
        a('''v_and_b32 v124, 1, v{t}
v_add_u32 v125, -2, v45
v_mul_i32_i24 v124, v124, v125
v_lshl_add_u32 v124, v124, 5, v43
s_mov_b64 exec, {ex}
s_cbranch_execz B_noep
buffer_load_dword v{j}, v124, {ws}, s{ea} offen
B_noep:
s_mov_b64 exec, -1'''.format(t=vTid,ex=sr(sEX,2),j=vJunk,ws=sr(sWS,4),ea=sEAO))
    if opt.get('pf',0)&12 and not opt.get('pp'): pf2(122)
    prej(0,1)
    a('''s_waitcnt lgkmcnt(0)
s_barrier''')
    stamp(a,opt,5,1)
    a('''ds_read_b32 v61, v58
ds_read_b32 v62, v59
s_mul_i32 s3, s{w}, 5
v_mov_b32 v63, 0'''.format(w=sWave))
    prej(1,2)
    a('''s_waitcnt lgkmcnt(0)
v_readfirstlane_b32 s{mx}, v62'''.format(w=sWave,mx=sMax))
    for i in range(5): a('v_readlane_b32 s%d, v61, s3\ns_add_u32 s3, s3, 1',38+2*i)
    for i in range(5): a('v_cmp_gt_u32 s[%d:%d], s%d, v61',38+2*i,39+2*i,38+2*i)
    for i in range(5): a('v_addc_co_u32 v63, vcc, 0, v63, s[%d:%d]',38+2*i,39+2*i)
    a('ds_add_u32 v58, v63 offset:256')
    prej(3,J)
    a('''s_waitcnt lgkmcnt(0)
s_barrier''')
    stamp(a,opt,6,1)
    a('''v_cmp_gt_u32 vcc, 40, v{L}
ds_read_b32 v63, v58 offset:256'''.format(L=vLane))
    prej(2,3)
    a('''s_waitcnt lgkmcnt(0)
v_cndmask_b32 v63, v{L}, v63, vcc
v_lshlrev_b32 v63, 2, v63
ds_permute_b32 v64, v63, v61
v_and_b32 v65, 1, v{L}
s_waitcnt lgkmcnt(0)
v_lshrrev_b32 v66, 6, v64
v_and_b32 v64, 63, v64
v_sub_u32 v64, 63, v64
v_mov_b32_dpp v67, v66 quad_perm:[0,0,2,2] row_mask:0xf bank_mask:0xf
v_mov_b32_dpp v68, v66 quad_perm:[0,0,2,2] row_mask:0xf bank_mask:0xf'''.format(L=vLane))
    scan(a,68,(2,4,8))
    a('''v_sub_u32 v69, v68, v67
v_readlane_b32 s3, v68, 63
v_lshl_add_u32 v69, v69, 1, v65
v_lshlrev_b32 v70, 2, v64
v_add_u32 v70, {NB}, v70
ds_write_b32 v70, v69
v_cmp_eq_u32 vcc, 0, v67
v_mul_u32_u24 v64, {PROW}, v64
v_mov_b32 v70, 0x100000
s_add_u32 s3, s3, 7
s_lshr_b32 s3, s3, 3
v_cndmask_b32 v64, v64, v70, vcc
v_cndmask_b32 v{pend}, v68, v70, vcc
ds_write_b32 v58, v64 offset:768
s_max_u32 s{Ls}, s3, 16
s_cmp_le_u32 s{Ls}, {cap}
s_cbranch_scc1 B_fit
s_cmp_gt_u32 s{wd}, 2
s_cselect_b32 s{wd}, 2, 1
s_waitcnt lgkmcnt(0)
s_barrier
s_branch B_round
B_fit:
v_cvt_f32_u32 v71, s{Ls}
v_rcp_f32 v71, v71
s_mov_b32 s{T}, {DA}
v_mul_f32 v72, 0.5, v71
v_mov_b32 v79, {CA}'''.format(NB=L_NB,PROW=PROW,pend=vPend,Ls=sL,cap=STEPCAP//8,wd=sWd,T=sT,DA=L_YA-32*SH,CA=L_DA))
    a('v_readlane_b32 s3, v67, 38\ns_or_b32 s3, s3, s%d\ns_cbranch_scc1 B_nozero',sI0)
    a('v_mov_b32 v116, 0\nv_mov_b32 v117, 0\nv_mov_b32 v118, 0\nv_mov_b32 v119, 0\nv_lshlrev_b32 v120, 4, v%d\nv_add_u32 v121, 0x10000, v120'%vTid)
    for i in range(13): a('ds_write_b128 v%d, v[116:119] offset:%d',120 if i<8 else 121,(i&7)*8192)
    a('v_cmp_gt_u32 vcc, %d, v249\ns_mov_b64 exec, vcc\nds_write_b128 v121, v[116:119] offset:%d\ns_mov_b64 exec, -1',(L_W-13*8192)//16,5*8192)
    a('B_nozero:')
    stamp(a,opt,7,1)
    for j in range(J):
        a('s_mov_b64 exec, %s\ns_cbranch_execz B_n_done\nds_read_b32 v%d, v%d offset:%d',sr(sEX+2*j,2),36+j,36+j,L_NB-L_CNT)
    a("""B_n_done:
s_mov_b64 exec, -1
s_mul_i32 s{c0}, s{w}, s{L}
s_add_u32 s{en}, s{c0}, s{L}
s_mov_b32 s{cur}, s{c0}
s_cmp_eq_u32 s{i0}, 0
s_cselect_b32 s{thr}, s{en}, 0
s_and_b32 s3, s{L}, 15
s_sub_u32 s{u0}, 16, s3
s_lshr_b32 s{it}, s{L}, 4
s_lshl_b32 s{L32}, s{L}, 5
s_sub_u32 s{bk}, 512, s{L32}
s_mov_b32 s{ph}, 0
s_movk_i32 s{inc}, 512
s_mov_b32 s{wi}, 0
s_mov_b32 s{xa}, 0
v_cmp_ge_u32 vcc, s{c0}, v{pend}
v_lshrrev_b32 v80, 2, v{kh}
v_mov_b32 v{lp}, v{LOFF}
v_mov_b32 v{xo}, v{LOFF}
v_lshlrev_b32 v{wad}, 4, v{lane}
s_bcnt1_i32_b64 s{p2}, vcc
s_mov_b32 s{p20}, s{p2}
v_add_u32 v{wad}, {LW}, v{wad}
s_lshl_b32 s3, s{p2}, 2
s_add_u32 s3, s3, {ROW}
v_add_u32 v{rp}, s3, v80
v_mov_b32 v80, s{L32}
s_waitcnt lgkmcnt(0)""".format(**K))
    for j in range(J):
        a("""s_mov_b64 exec, {ex}
s_cbranch_execz B_s_done
v_lshrrev_b32 v73, 6, v{pos}
v_lshl_add_u32 v73, v73, 1, v{nb}
v_lshrrev_b32 v75, 1, v73
v_cvt_f32_u32 v74, v75
v_fma_f32 v74, v74, v71, v72
v_cvt_u32_f32 v74, v74
v_mad_u32_u24 v74, v74, s{L}, {SH}
v_cmp_lt_u32 vcc, v75, v74
v_mad_u32_u24 v75, v73, 24, v79
v_lshl_add_u32 v76, v73, 2, v79
v_lshl_add_u32 v73, v73, 4, s{T}
v_cndmask_b32 v74, 0, v80, vcc
v_add_u32 v74, v74, v73
ds_write2_b64 v75, {q0}, {q1} offset1:1
ds_write_b64 v75, {q2} offset:16
ds_write_b32 v76, v{m3} offset:{rc}
ds_write_b96 v73, {cv} offset:{ya}
ds_write_b32 v74, v{c3} offset:12""".format(ex=sr(sEX+2*j,2),pos=28+j,nb=36+j,mv=vr(4*j,4),cv=vr(88+4*j,3),c3=88+4*j+3,ya=32*SH,q0=vr(CR+6*j,2),q1=vr(CR+6*j+2,2),q2=vr(CR+6*j+4,2),m3=4*j+3,rc=L_REC-L_DA,L=sL,T=sT,SH=SH))
    a("""B_s_done:
s_mov_b64 exec, -1
s_lshl_b32 s3, s{c0}, 5
s_add_u32 s3, s3, {YS}
v_add_u32 v82, s3, v{kh}
s_lshl_b32 s{T}, s{u0}, 5
s_sub_u32 s3, s{c0}, s{u0}
s_lshl_b32 s3, s3, 3
s_add_u32 s3, s3, {RC}
v_add_u32 v83, s3, v{pat}
v_add_u32 v{rec}, 128, v83
s_mul_i32 s3, s{c0}, 48
s_add_u32 s3, s3, {DA}
v_lshrrev_b32 v84, 1, v{kh}
v_add3_u32 v84, v84, v{kh}, s3
v_and_b32 v85, 0xff, v234
v_cmp_eq_u32 vcc, 3, v{dam}
v_add_u32 v85, {LC}, v85
v_lshrrev_b32 v78, 8, v234
v_cndmask_b32 v85, v85, v84, vcc
v_cmp_eq_u32 vcc, 3, v{cbm}
v_and_b32 v77, 8, v{lane}
v_add3_u32 v84, v84, v77, 8
v_add_u32 v78, {LC}, v78
v_cndmask_b32 v84, v78, v84, vcc
s_cmp_gt_u32 s{u0}, 15
s_cselect_b32 s3, 512, 0
s_sub_u32 s3, s3, s{T}
s_add_u32 s3, s3, {dYA}
v_add_u32 v{ya}, s3, v82
s_cmp_gt_u32 s{u0}, 14
s_cselect_b32 s3, 512, 0
s_sub_u32 s3, s3, s{T}
s_ashr_i32 s3, s3, 1
v_mad_i32_i24 v{da}, v{dam}, s3, v85
v_mad_i32_i24 v{cb}, v{cbm}, s3, v84
v_mov_b32 v{t0}, v85
v_mov_b32 v{t1}, v84
s_movk_i32 s{ih}, 256
v_add_u32 v81, s{L32}, v82
s_sub_u32 s3, 0x3e0, s{T}""".format(**K))
    stamp(a,opt,8,1)
    for r in range(DEP):
        a('s_and_b32 s3, s3, %d\nv_add_u32 v%d, s3, v81\ns_add_u32 s3, s3, 32',32*DEP-32,F0+r)
    a('s_add_u32 s%d, s%d, 1\ns_and_b32 s%d, s%d, %d\ns_waitcnt lgkmcnt(0)\ns_barrier',sInc8,sU0,sInc8,sInc8,DEP-1)
    stamp(a,opt,3)
    e=Asm(); yw=12
    if not opt.get('noprio'): e('s_setprio 3')
    e('ds_read_b32 v%d, v81 offset:%d',F0+8,yw)
    e('ds_read_b32 v86, v83\nds_read_b32 v%d, v%d',vRecA,vREC)
    for r in range(DEP): e('ds_read_b32 v%d, v%d offset:%d',F0+r,F0+r,yw+32)
    e('\n'.join(trs(0,T0,T1))); e('ds_read_b128 %s, v82 offset:%d\ns_waitcnt lgkmcnt(%d)',vr(Y0,4),32*SH,DEP+3)
    e('v_add_u32 v%d, v%d, v%d\nv_add_u32 v86, v%d, v86\nv_add_u32 v%d, v%d, v%d',F0+8,F0+8,LOFF,vKh16,vRecA,vKh16,vRecA)
    e('s_lshl_b32 s3, s%d, 3\nv_cmp_gt_u32 vcc, s3, v%d\nv_mov_b32 v87, 0x7fff0000\ns_cmp_gt_u32 s%d, 8\nv_cndmask_b32 v86, v86, v87, vcc\ns_cselect_b64 vcc, %s, 0',sU0,vPat,sU0,sr(sMhi,2))
    e('s_nop 0\nv_cndmask_b32 v86, v86, v%d, vcc',vRecA); e(eald(EA,86))
    for l in xloads(ACC+4,F0+8): e(l)
    e('s_waitcnt lgkmcnt(0)')
    e('s_setprio 1')
    for r in range(DEP): e('v_add_u32 v%d, v%d, v%d',F0+r,F0+r,LOFF)
    for r in range(1,DEP): e('s_cmp_eq_u32 s%d, %d\ns_cbranch_scc1 B_x%d',sInc8,r,r)
    for r in range(DEP):
        e('B_x%d:',r)
        for l in xloads(X0+4*r,F0+r): e(l)
    for r in range(DEP-1):
        e('s_cmp_le_u32 s%d, %d\ns_cbranch_scc1 B_xd',sInc8,r)
        for l in xloads(X0+4*r,F0+r): e(l)
    e('B_xd:')
    for i in range(4): e('v_mov_b32 v%d, v%d',Y0+4+i,Y0+i)
    for l in nextseg(): e(l)
    def cpy(m): return 's_mov_b64 exec, %s\n%s\ns_mov_b64 exec, -1\n%s\ns_nop 0'%(sr(m,2),eald(EA,vRecA),'\n'.join(trs(48,T0,T1)))
    mF=['v_mfma_f32_32x32x16_bf16 %s, %s, %s, 0'%(vr(F0+16*b,16),vr(COEF,4),vr(ACC+4,4)) for b in range(2)]
    e('s_cmp_gt_u32 s%d, 8\ns_cbranch_scc1 B_entB',sU0)
    eA=Asm()
    for p in range(5): eA(wread(p,1,24*p+4)); eA(wread(p,0,park(p,0)))
    eA('s_waitcnt vmcnt(%d) lgkmcnt(0)'%(4*DEP+4))
    for p in range(5): eA(mfR(p,1,24*p+4))
    for p in range(5): eA(mfR(p,0,park(p,0)))
    eA('s_waitcnt vmcnt(%d)',4*DEP); eA(mF[0]); eA(mF[1]); eA(cpy(sMhi)); eA('s_nop 7\ns_cmp_le_u32 s%d, 4\ns_cbranch_scc1 B_go',sU0)
    for p in range(5): eA(wread(p,1,park(p,8)))
    eA('s_branch B_go')
    eB=Asm()
    pk=lambda p: W4 if p==4 else 24*(p+1)+20
    for p in range(5): eB(wread(p,0,24*p+16)); eB(wread(p,1,pk(p)))
    eB('s_waitcnt vmcnt(%d) lgkmcnt(0)'%(4*DEP+4))
    for p in range(5): eB(mfR(p,0,24*p+16))
    for p in range(5): eB(mfR(p,1,pk(p)))
    eB('s_waitcnt vmcnt(%d)',4*DEP); eB(mF[0]); eB(mF[1]); eB(cpy(sMlo)); eB('s_nop 7\ns_cmp_le_u32 s%d, 12\ns_cbranch_scc1 B_go',sU0)
    for p in range(5): eB(wread(p,0,park(p,0)))
    for x in (eA,eB): check_seq(e.lines+x.lines+step(0,True),'entry')
    a.lines+=e.lines+eA.lines; a('B_entB:'); a.lines+=eB.lines
    a('B_go:\ns_sub_u32 s3, s%d, 1\ns_and_b32 s3, s3, 7\ns_cmp_lt_u32 s3, %d\ns_cbranch_scc1 B_go1\ns_waitcnt vmcnt(0)\nB_go1:',sU0,9-DEP)
    if not opt.get('noprio'): a('s_cmp_lt_u32 s%d, 4\ns_cbranch_scc1 B_go2\ns_setprio 2\nB_go2:',sWave)
    stamp(a,opt,4)
    def disp(lo,bit):
        if bit==0: a('s_bitcmp1_b32 s%d, 0\ns_cbranch_scc1 B_M%d\ns_branch B_M%d',sU0,lo+1,lo); return
        a('s_bitcmp1_b32 s%d, %d\ns_cbranch_scc1 B_D%d_%d',sU0,bit,bit,lo); disp(lo,bit-1)
        a('B_D%d_%d:',bit,lo); disp(lo+(1<<bit),bit-1)
    disp(0,3)
    a('.p2align 6')
    if opt.get('sh'): a('s_nop 0')
    for u in range(16):
        a('B_N%d:',u); a('\n'.join(step(u,False))); a('s_cbranch_scc1 B_FL%d',u)
        check_seq(step((u-1)&15,False)+step(u,False)+step((u+1)&15,False),'N%d'%u)
    a('s_branch B_N0')
    for u in range(16):
        a('B_M%d:',u); a('\n'.join(step(u,True))); a('s_cbranch_scc0 B_N%d',(u+1)&15)
        a('B_FL%d:',u); a('\n'.join(flush(u)))
        if u<15: a('s_cbranch_scc1 B_exit'); a('\n'.join(nextseg()))
    a('s_cbranch_scc0 B_seg0\ns_cmp_eq_u32 s%d, 1\ns_cbranch_scc1 B_exit',sPhase)
    if opt.get('dbg') and not opt.get('fine'): a('s_memrealtime s[80:81]')
    a('\n'.join(restart()))
    a('B_seg0:'); a('\n'.join(nextseg())); a('s_branch B_M0')
    check_seq(step(15,False)+flush(15)+restart()+nextseg()+step(0,True),'restart')
    for u in range(16): a('B_FC%d:\ns_call_b64 %s, B_add%d\ns_branch B_FP%d',u,sr(sRet,2),u&1,u)
    for b in range(2): a('\n'.join(addold(b)))
    a('B_exit:')
    stamp(a,opt,6)
    a('''s_add_u32 s{i0}, s{i0}, s{wd}
s_cmp_ge_u32 s{i0}, s{mx}
s_cbranch_scc1 B_gemm
s_waitcnt vmcnt(0) lgkmcnt(0)
{sw}
s_barrier
s_branch B_round'''.format(i0=sI0,wd=sWd,mx=sMax,sw='\n'.join(swp())))
    gemm(a,opt)
    seen={}
    for i,l in enumerate(a.lines):
        if l.strip() in ('s_cbranch_execz B_c_done','s_cbranch_execz B_n_done','s_cbranch_execz B_s_done'):
            seen[l]=seen.get(l,0)+1
            if seen[l]<=2: a.lines[i]=';'
    a('B_end:\ns_endpgm')

def gemm(a,opt):
    G=Asm(); OA=80; RB=124; NR=12; GT=172
    G('''B_gemm:
s_waitcnt lgkmcnt(0)
s_mul_i32 s3, s{w}, 20480
s_add_u32 s3, s3, {WF}
v_lshlrev_b32 v{t}, 4, v{L}
s_nop 7'''.format(w=sWave,WF=WF,t=vTmp,L=vLane))
    H0=[s for s in range(20) if not s&2]; H1=[s for s in range(20) if s&2]
    for i in range(1,5): G('s_add_u32 s%d, s3, %d',sEX+i,4096*i)
    PW=dict(zip(H0,list(range(156,184,4))+[240,244,248])); PA=196
    wl=lambda s,d,ad:G('buffer_load_dwordx4 %s, v%d, %s, s%d offen offset:%d',vr(d,4),ad,sr(sWS,4),sEX+s//4,(s&3)*1024)
    G('s_mov_b32 s%d, s3\nv_add_u32 v194, %d, v%d\nv_mov_b32 v195, v%d\ns_cmp_ge_u32 s%d, 4\ns_cbranch_scc1 B_wy',sEX,4*20480,vTmp,vLane,sWave)
    two=opt.get('two')
    if two:
        for s in H0: wl(s,4*s,vTmp); wl(s,PW[s],194)
    G('B_wy:')
    if not two:
        for s in H0: wl(s,4*s,vTmp)
    for s in H1: wl(s,4*s,vTmp)
    G('s_waitcnt vmcnt(%d)',10 if two else 20)
    Pa,Pb0,Pb1,Oa,Ob0,Ob1=ACC,ACC+1,ACC+2,ACC+3,ACC+4,ACC+5
    G('''v_and_b32 v{x}, 15, v{L}
v_lshrrev_b32 v{y}, 4, v{L}
v_mul_u32_u24 v{Pa}, {PROW}, v{x}
v_lshl_add_u32 v{Pa}, v{y}, 4, v{Pa}
s_lshl_b32 s3, s{w}, 5
s_add_u32 s3, s3, {LW}
v_lshl_add_u32 v{z}, v{y}, 3, s3
s_movk_i32 s3, 1040
v_mad_u32_u24 v{Oa}, v{x}, s3, v{z}
v_and_b32 v{x}, 7, v{L}
v_add_u32 v{x}, 32, v{x}
v_mul_u32_u24 v{Pb0}, {PROW}, v{x}
v_lshl_add_u32 v{Pb0}, v{y}, 4, v{Pb0}
v_mad_u32_u24 v{Ob0}, v{x}, s3, v{z}
v_bfe_u32 v{y}, v{L}, 3, 1
v_mul_u32_u24 v{x}, 768, v{y}
v_add_u32 v{Pb1}, v{Pb0}, v{x}
v_lshl_add_u32 v{Ob1}, v{y}, 8, v{Ob0}
s_and_b32 s3, s{w}, 3
v_lshrrev_b32 v{x}, 3, v{L}
v_lshl_add_u32 v{x}, v{x}, 2, s3
v_mul_u32_u24 v{x}, {PROW}, v{x}
v_and_b32 v{y}, 7, v{L}
v_lshl_add_u32 v193, v{y}, 4, v{x}
s_cmp_lt_u32 s{w}, 4
s_cbranch_scc1 B_gw
s_barrier
@HR
s_branch B_g2
B_gw:
s_setprio {gp}
v_and_b32 v{x}, 7, v{L}
v_lshlrev_b32 v{x}, 2, v{x}
v_add_u32 v{x}, {FL}, v{x}
v_mov_b32 v{z}, 128
B_gspin:
ds_read_b32 v{y}, v{x}
s_waitcnt lgkmcnt(0)
v_cmp_gt_i32 vcc, v{z}, v{y}
s_cmp_lg_u64 vcc, 0
s_cbranch_scc1 B_gspin
B_g1:'''.format(x=ACC+6,y=ACC+7,z=ACC+8,L=195,Pa=Pa,Pb0=Pb0,Pb1=Pb1,Oa=Oa,Ob0=Ob0,Ob1=Ob1,PROW=PROW,n0=sN0,T=sT,w=sWave,nn=sNN,FL=L_FLAG,LW=L_W,gp=opt.get('gp',0)))
    i=G.lines.index('    @HR'); G.lines[i:i+1]=['    ds_read_b128 %s, v193 offset:%d'%(vr(OA+4*k,4),256*k) for k in range(11)]+['    s_waitcnt lgkmcnt(4)']
    if not two: G.lines[i:i+13]=['    s_branch B_g1']
    t0=[(0,Pa,0),(1,Pa,16*PROW),(2,Pb0,0)]
    t1=[(3+3*t+j,Pa,16*PROW*t+512+768*j) for t in range(2) for j in range(3)]+[(9,Pb1,512),(10,Pb0,512+1536)]
    ko=lambda s:64*(s if s<8 else s-8)
    def run(ops,extra,vm,NR,two=False):
        rd=lambda i:'ds_read_b128 %s, v%d offset:%d'%(vr(RB+4*(i%NR),4),ops[i][2],ops[i][3])
        q=[]; GS=opt.get('gs',4); assert len(ops)%GS==0
        for i in range(NR-GS): G(rd(i)); q.append(i)
        for i0 in range(0,len(ops),GS):
            for i in range(i0+NR-GS,min(i0+NR,len(ops))): G(rd(i)); q.append(i)
            w='lgkmcnt(%d)'%min(15,len(q)-1-q.index(i0+GS-1))
            vv=[vm[i] for i in range(i0,i0+GS) if i in vm]
            if vv: w='vmcnt(%d) '%min(vv)+w
            G('s_waitcnt '+w)
            for i in range(i0,i0+GS):
                s,ac,ad,off=ops[i]; acc=vr(OA+4*ac,4)
                G('v_mfma_f32_16x16x32_bf16 %s, %s, %s, %s',acc,vr(4*s,4),vr(RB+4*(i%NR),4),'0' if s in(0,8) else acc)
                if two: acc=vr(PA+4*ac,4); G('v_mfma_f32_16x16x32_bf16 %s, %s, %s, %s',acc,vr(PW[s],4),vr(RB+4*(i%NR),4),'0' if s in(0,8) else acc)
                n=0
                while extra and extra[0][0]<=i and n<opt.get('nx',2):
                    l=extra.pop(0)[1]; G(l); n+=1
                    if l.startswith('ds_'): q.append(-1)
    ops=[]; vm={}
    for n,s in enumerate(H0):
        vm[len(ops)]=28-2*n if two else 19-n; ops+=[(s,ac,ad,off+ko(s)) for ac,ad,off in (t0 if s<8 else t1)]
    run(ops,[],vm,8 if two else 12,two)
    if not two: G('s_cmp_ge_u32 s%d, 4\ns_cbranch_scc1 B_g2',sWave)
    else: G('''v_mov_b32 v{z}, 256
ds_write_b32 v{f}, v{z}
B_gspin2:
ds_read_b32 v{y}, v{x}
s_waitcnt lgkmcnt(0)
v_cmp_gt_i32 vcc, v{z}, v{y}
s_and_b32 s3, vcc_lo, 15
s_cbranch_scc1 B_gspin2
s_nop 1'''.format(x=ACC+6,y=ACC+7,z=ACC+8,f=vFlag))
    for k in range(11 if two else 0): G('ds_write_b128 v193, %s offset:%d',vr(PA+4*k,4),256*k)
    stamp(G,opt,7)
    G('s_waitcnt lgkmcnt(0)\ns_barrier\nB_g2:')
    stamp(G,opt,8); stamp(G,opt,5,2)
    st=lambda d,ad,off,so='0':'ds_write_b64 v%d, %s offset:%d'%(ad,vr(d,2),off+(16*1040 if so=='s3' else 0))
    ops=[(s,ac,ad,off+ko(s)) for s in H1[:4] for ac,ad,off in t0]; vm={0:6,12:0}
    ex=[]
    for t in range(3):
        sig=[]
        for c in range(4*t,4*t+4):
            r=OA+c; g=GT+c
            sig+=['v_mul_f32 v%d, 0xbfb8aa3b, v%d'%(g,r),'v_exp_f32 v%d, v%d'%(g,g),'v_add_f32 v%d, 1.0, v%d'%(g,g),'v_rcp_f32 v%d, v%d'%(g,g)]
        r=OA+4*t
        ex+=[(17,sig[4*c+k]) for k in range(4) for c in range(4)]
        ex+=[(17,'v_cvt_pk_bf16_f32 v%d, v%d, v%d'%(r,r,r+1)),(17,'v_cvt_pk_bf16_f32 v%d, v%d, v%d'%(r+1,r+2,r+3)),(17,st(r,Oa if t<2 else Ob0,0,'s3' if t==1 else '0'))]
        for n,(ac,ad,off) in list(enumerate(t1))[3*t:3*t+3]:
            ops+=[(s,ac,ad,off+ko(s)) for s in H1[4:]]
            gt=GT+4*t; r=OA+4*ac; rdy=len(ops)+7
            ex+=[(rdy,'v_mul_f32 v%d, v%d, v%d'%(r+k,r+k,gt+k)) for k in range(4)]
            ex+=[(rdy,'v_cvt_pk_bf16_f32 v%d, v%d, v%d'%(r,r,r+1)),(rdy,'v_cvt_pk_bf16_f32 v%d, v%d, v%d'%(r+1,r+2,r+3))]
            ex.append((rdy,st(r,Oa,256*(1+n%3),'s3' if n>=3 else '0') if n<6 else st(r,Ob1 if n==6 else Ob0,256 if n==6 else 768)))
    ex.sort(key=lambda x:x[0])
    run(ops,ex,vm,12)
    G('s_nop 7')
    for _,l in ex: G(l)
    stamp(G,opt,6,2)
    G('''s_mul_i32 s3, s{w}, 5200
s_add_u32 s3, s3, {LW}
v_add_u32 v0, s3, v{t}
s_mul_i32 s3, s{w}, 5
s_add_u32 s3, s3, s{n0}
s_lshl_b32 s3, s3, 10
s_add_u32 s{T}, s3, 4096
s_add_u32 s{o2}, s{n0}, s{nn}
s_lshl_b32 s{o2}, s{o2}, 10
s_waitcnt lgkmcnt(0)
s_barrier'''.format(w=sWave,LW=L_W,t=vTmp,n0=sN0,nn=sNN,T=sT,o2=sOUT+2))
    stamp(G,opt,7,2)
    for i in range(5): G('ds_read_b128 %s, v0 offset:%d',vr(4+4*i,4),1040*i)
    for i in range(5): G('s_waitcnt lgkmcnt(%d)\nbuffer_store_dwordx4 %s, v%d, %s, s%d offen offset:%d%s',4-i,vr(4+4*i,4),vTmp,sr(sOUT,4),3 if i<4 else sT,(i&3)*1024,{0:'',1:' sc1',2:' nt',3:' sc0 sc1'}[opt.get('of',0)])
    stamp(G,opt,8,2)
    check_seq(G.lines,'gemm')
    a.lines+=G.lines
    if opt.get('dbg'):
        a('s_waitcnt vmcnt(0)'); stamp(a,opt,9)
        a('s_lshl_b32 s3, s2, 3\ns_add_u32 s3, s3, s%d\ns_lshl_b32 s3, s3, 6\ns_add_u32 s3, s3, %d\nv_mov_b32 v20, 0',sWave,STAMP+0x10000)
        for i in range(10): a('v_mov_b32 v%d, s%d',i,70+2*i)
        a('v_mov_b32 v10, s%d\ns_sub_u32 s4, s94, s92\nv_mov_b32 v11, s4\n; clk %d %d',sL,opt.get('c0',4),opt.get('c1',6))
        for i in range(3): a('buffer_store_dwordx4 %s, v20, %s, s3 offen offset:%d',vr(4*i,4),sr(sWS,4),16*i)
```
